```python
import torch

def _softmax(x, axis=-1):
    return torch.softmax(x, dim=axis)
def _gelu(x):
    return torch.nn.functional.gelu(x, approximate="tanh")
def _silu(x):
    return torch.nn.functional.silu(x)
def _sigmoid(x):
    return torch.sigmoid(x)
def _layernorm(x, axis=-1, eps=1e-5):
    m = x.mean(dim=axis, keepdim=True)
    v = x.var(dim=axis, keepdim=True, unbiased=False)
    return (x - m) / torch.sqrt(v + eps)
def _scatter_add(tgt, idx, src, axis=0):
    return tgt.clone().index_add_(axis, idx, src)
def _segment_sum(src, seg, n):
    out = torch.zeros((n,) + src.shape[1:], dtype=src.dtype)
    return out.index_add_(0, seg, src)
def _pad(x, pw):
    flat = tuple(v for pair in reversed(pw) for v in pair)
    return torch.nn.functional.pad(x, flat)

kernel_name = 'gated_mix__sliding_block_cached__gqa_block_cached__decode'

def setup_inputs():

    _w = (lambda a: (lambda t: t.to(torch.bfloat16) if t.is_floating_point() else t)(torch.as_tensor(a)))
    def _A_setup():
        B, Sq, D = 1, 1, 640
        Hq, Hkv, Sk, Dh = 32, 32, 4096, 192
        assert Hq % Hkv == 0, (Hq, Hkv)
        return {
            "x": _w((lambda *s: torch.randn(*s, dtype=torch.bfloat16) * 0.05)(B, Sq, D)),
            "k_cache": _w((lambda *s: torch.randn(*s, dtype=torch.bfloat16) * 6.4)(B, Hkv, Sk, Dh)),
            "v_cache": _w((lambda *s: torch.randn(*s, dtype=torch.bfloat16) * 0.05)(B, Hkv, Sk, Dh)),
            "wq": _w((lambda *s: torch.randn(*s, dtype=torch.bfloat16) * 6.4)(D, Hq * Dh) * (D ** -0.5)),
            "wo": _w((lambda *s: torch.randn(*s, dtype=torch.bfloat16) * 0.05)(Hq * Dh, D) * ((Hq * Dh) ** -0.5)),
        }
    _A_in = _A_setup()

    def _B_setup():
        B, Sq, D = 1, 1, 640
        Hq, Hkv, Sk, Dh = 32, 32, 4096, 192
        assert Hq % Hkv == 0, (Hq, Hkv)
        return {
            "x": _w((lambda *s: torch.randn(*s, dtype=torch.bfloat16) * 0.05)(B, Sq, D)),
            "k_cache": _w((lambda *s: torch.randn(*s, dtype=torch.bfloat16) * 6.4)(B, Hkv, Sk, Dh)),
            "v_cache": _w((lambda *s: torch.randn(*s, dtype=torch.bfloat16) * 0.05)(B, Hkv, Sk, Dh)),
            "wq": _w((lambda *s: torch.randn(*s, dtype=torch.bfloat16) * 6.4)(D, Hq * Dh) * (D ** -0.5)),
            "wo": _w((lambda *s: torch.randn(*s, dtype=torch.bfloat16) * 0.05)(Hq * Dh, D) * ((Hq * Dh) ** -0.5)),
        }
    _B_in = _B_setup()

    return {
        "A_x": _A_in["x"],
        "A_k_cache": _A_in["k_cache"],
        "A_v_cache": _A_in["v_cache"],
        "A_wq": _A_in["wq"],
        "A_wo": _A_in["wo"],
        "B_x": _B_in["x"],
        "B_k_cache": _B_in["k_cache"],
        "B_v_cache": _B_in["v_cache"],
        "B_wq": _B_in["wq"],
        "B_wo": _B_in["wo"],
        "gate_w": _w((lambda *s: torch.randn(*s, dtype=torch.bfloat16) * 0.05)(640) * 16.0),
    }

def reference(A_x, A_k_cache, A_v_cache, A_wq, A_wo, B_x, B_k_cache, B_v_cache, B_wq, B_wo, gate_w):
    def _A_ref(x, k_cache, v_cache, wq, wo):
        B, Sq, D = x.shape
        Hq, Dh = 32, 192
        Hkv, Sk = k_cache.shape[1], k_cache.shape[2]
        W = min(4096, max(256, Sk // 4))
        rep = Hq // Hkv
        q = (lambda x, *d: x.permute(*d))((x @ wq).reshape(B, Sq, Hq, Dh), 0, 2, 1, 3)
        k = (lambda x, n, axis: torch.repeat_interleave(x, n, dim=axis))(k_cache[:, :, Sk - W:, :], rep, axis=1)
        v = (lambda x, n, axis: torch.repeat_interleave(x, n, dim=axis))(v_cache[:, :, Sk - W:, :], rep, axis=1)
        scores = torch.einsum("bhqd,bhkd->bhqk", q, k) * (Dh ** -0.5)
        p = _softmax(scores, axis=-1)
        o = torch.einsum("bhqk,bhkd->bhqd", p, v)
        return (lambda x, *d: x.permute(*d))(o, 0, 2, 1, 3).reshape(B, Sq, Hq * Dh) @ wo

    def _B_ref(x, k_cache, v_cache, wq, wo):
        B, Sq, D = x.shape
        Hq, Dh = 32, 192
        Hkv = k_cache.shape[1]
        rep = Hq // Hkv
        q = (lambda x, *d: x.permute(*d))((x @ wq).reshape(B, Sq, Hq, Dh), 0, 2, 1, 3)
        k = (lambda x, n, axis: torch.repeat_interleave(x, n, dim=axis))(k_cache, rep, axis=1)
        v = (lambda x, n, axis: torch.repeat_interleave(x, n, dim=axis))(v_cache, rep, axis=1)
        scores = torch.einsum("bhqd,bhkd->bhqk", q, k) * (Dh ** -0.5)
        p = _softmax(scores, axis=-1)
        o = torch.einsum("bhqk,bhkd->bhqd", p, v)
        return (lambda x, *d: x.permute(*d))(o, 0, 2, 1, 3).reshape(B, Sq, Hq * Dh) @ wo

    x = A_x
    g = _sigmoid((x * gate_w).sum(-1, keepdims=True))
    a = _A_ref(x, A_k_cache, A_v_cache, A_wq, A_wo)
    b = _B_ref(x, B_k_cache, B_v_cache, B_wq, B_wo)
    return g * a + (1 - g) * b
```

```python
import re

def v(n): return "v%d" % n
def vr(n, c): return "v[%d:%d]" % (n, n + c - 1) if c > 1 else "v%d" % n
def s(n): return "s%d" % n
def sr(n, c): return "s[%d:%d]" % (n, n + c - 1) if c > 1 else "s%d" % n

_REG = re.compile(r"^(v|s)(\d+)$|^(v|s)\[(\d+):(\d+)\]$")
def regs_of(tok):
    tok = tok.strip()
    if tok == "vcc": return {("s", "vcc")}
    if tok == "exec": return {("s", "exec")}
    m = _REG.match(tok)
    if not m: return set()
    if m.group(1): return {(m.group(1), int(m.group(2)))}
    return {(m.group(3), i) for i in range(int(m.group(4)), int(m.group(5)) + 1)}

TRANS = ("v_exp_f32", "v_log_f32", "v_rcp_f32", "v_rsq_f32", "v_sqrt_f32", "v_sin_f32", "v_cos_f32")

class Ins:
    def __init__(self, text):
        self.text = text
        t = text.split(";")[0].strip()
        self.label = t[:-1] if t.endswith(":") else None
        self.op = None; self.dst = set(); self.src = set(); self.kind = None
        self.dpp = False; self.ws = 0; self.target = None; self.ops = []
        if self.label or not t or t.startswith("."):
            return
        parts = t.split(None, 1)
        self.op = parts[0]
        rest = parts[1] if len(parts) > 1 else ""
        ops = [o.strip() for o in rest.split(",")] if rest else []
        mods = ""
        if ops:
            l = ops[-1].split(None, 1)
            ops[-1] = l[0]
            mods = l[1] if len(l) > 1 else ""
        self.ops = ops; self.mods = mods
        op = self.op
        self.ws = 1
        if op == "s_nop": self.ws = int(ops[0], 0) + 1
        if op.startswith("v_"):
            self.kind = "valu"
            self.dpp = op.endswith("_dpp") or "row_" in mods or "quad_perm" in mods
            base = op.replace("_e32", "").replace("_e64", "")
            self.base = base
            if "permlane" in op and "swap" in op:
                self.dst = regs_of(ops[0]) | regs_of(ops[1]); self.src = set(self.dst)
            else:
                self.dst = regs_of(ops[0])
                for o in ops[1:]: self.src |= regs_of(o)
                if self.dpp or op.startswith(("v_dot2c", "v_fmac", "v_mac")): self.src |= {r for r in self.dst if r[0] == "v"}
                if op.startswith(("v_add_co", "v_sub_co", "v_addc_co")):
                    self.dst |= regs_of(ops[1])
            self.trans = base.replace("_dpp", "") in TRANS
            self.dot = op.startswith("v_dot")
            self.perm = "permlane" in op
            self.rdl = op.startswith(("v_readfirstlane", "v_readlane"))
        elif op.startswith("buffer_"):
            self.kind = "vmem"
            if op.startswith("buffer_load"):
                self.dst = regs_of(ops[0])
                for o in ops[1:]: self.src |= regs_of(o)
                self.store = False
            else:
                for o in ops: self.src |= regs_of(o)
                self.store = True
                self.data = regs_of(ops[0])
                self.wide = op.endswith(("x3", "x4"))
        elif op.startswith("ds_"):
            self.kind = "ds"
            if op.startswith("ds_read"):
                self.dst = regs_of(ops[0])
                for o in ops[1:]: self.src |= regs_of(o)
            else:
                for o in ops: self.src |= regs_of(o)
        elif op.startswith("s_"):
            self.kind = "salu"
            if op.startswith(("s_cbranch", "s_branch")): self.target = ops[0]
            elif ops and not op.startswith(("s_cmp", "s_waitcnt", "s_nop", "s_sleep", "s_barrier", "s_endpgm", "s_setprio")):
                self.dst = regs_of(ops[0])
        else:
            raise ValueError("unknown op " + text)

def need(prod, cons):
    n = 0
    if prod.kind == "valu":
        vd = {r for r in prod.dst if r[0] == "v"}
        sd = {r for r in prod.dst if r[0] == "s"}
        if cons.kind == "valu":
            cv = {r for r in cons.src if r[0] == "v"}
            if cons.dpp and vd & cv: n = max(n, 2)
            if cons.dpp and ("s", "exec") in sd: n = max(n, 5)
            if cons.perm and vd & cv: n = max(n, 2)
            if cons.rdl and vd & cv: n = max(n, 1)
            if prod.trans and vd & cv: n = max(n, 1)
            cs = {r for r in cons.src if r[0] == "s"}
            if sd & cs: n = max(n, 2)
            if prod.dot:
                if prod.op == cons.op:
                    ab = set()
                    for o in cons.ops[1:3]: ab |= regs_of(o)
                    if vd & ab: n = max(n, 3)
                elif vd & (cv | cons.dst): n = max(n, 3)
        elif cons.kind in ("vmem", "ds"):
            if cons.kind == "vmem" and sd & cons.src: n = max(n, 5)
            if prod.dot and vd & (cons.src | cons.dst): n = max(n, 3)
            if prod.trans and vd & cons.src: n = max(n, 1)
    elif prod.kind == "vmem" and prod.store and prod.wide:
        if cons.kind == "valu" and prod.data & cons.dst: n = max(n, 2)
        elif cons.kind in ("vmem", "ds") and prod.data & cons.dst: n = max(n, 1)
    elif prod.kind in ("vmem", "ds") and cons.kind == "valu" and cons.dpp:
        pass
    return n

def hazard_pass(lines):
    ins = [Ins(l) for l in lines]
    labels = {i.label: k for k, i in enumerate(ins) if i.label}
    jumps = {}
    for k, i in enumerate(ins):
        if i.target: jumps.setdefault(labels[i.target], []).append(k)
    extra = [0] * len(ins)
    total = 0
    for k, i in enumerate(ins):
        if i.op is None or i.kind == "salu": continue
        n = back2(ins, jumps, extra, k, i)
        if n > 0: extra[k] = n; total += n
    out = []
    for k, i in enumerate(ins):
        if extra[k]: out.append("    s_nop %d" % (extra[k] - 1))
        out.append(i.text)
    return out, total

def back2(ins, jumps, extra, k0, cons):
    MAXW = 5
    best = 0
    stack = [(k0 - 1, 0)]
    seen = set()
    while stack:
        k, dist = stack.pop()
        while k >= 0 and dist < MAXW:
            if (k, dist) in seen: break
            seen.add((k, dist))
            i = ins[k]
            if i.label is not None:
                for j in jumps.get(k, []): stack.append((j, dist))
                p = k - 1
                while p >= 0 and ins[p].op is None and ins[p].label is None: p -= 1
                if p >= 0 and ins[p].op in ("s_branch", "s_endpgm"): break
                k -= 1; continue
            if i.op is None: k -= 1; continue
            best = max(best, need(i, cons) - dist)
            dist += i.ws + extra[k]
            k -= 1
    return best

class VM:
    def __init__(self, emit):
        self.ops = []
        self.emit = emit
        self.done = 0
    def issue(self, tag, group=None): self.ops.append((tag, group))
    def count_after(self, idx, group=None):
        return sum(1 for t, g in self.ops[idx + 1:] if g is None or g == group)
    def wait(self, tag, group=None, force=False):
        idx = max(i for i, (t, g) in enumerate(self.ops) if t == tag)
        if idx < self.done and not force: return
        n = min(63, self.count_after(idx, group))
        self.emit("s_waitcnt vmcnt(%d)" % n)
        if group is None: self.done = max(self.done, idx + 1)
    def all_done(self): self.done = len(self.ops)
    def outstanding(self): return len(self.ops) - self.done
```

```python
import sys, os
sys.path.insert(0, os.path.dirname(os.path.abspath(__file__)))
from asmlib import *

KNAME = "gated_mix__sliding_block_cached__gqa_block_cached__decode_kernel"
DEF = dict(E=4, KNT=1, VNT=1, WONT=0, WQNT=0, STAMP=0, DUMP=0, KPOS="", SLEEP1=0, SLEEP2=4, LIMIT=1 << 20)

def generate(**kw):
    o = dict(DEF); o.update(kw)
    E = o["E"]; NG = 22; NWQ = 20; NS = NWQ + E
    L = []
    def e(t): L.append("    " + t)
    def lab(t): L.append(t + ":")
    def c(t): L.append("    ; " + t)
    vm = VM(e)

    sB = 2
    pAX, pAK, pAV, pAWQ, pAWO, pBX, pBK, pBV = 4, 6, 8, 10, 12, 14, 16, 18
    pBWQ, pBWO, pGW, pOUT, pDBG, pWS = 20, 22, 24, 26, 28, 30
    SK, SV, SWQ, SWO, SWS, SDBG, SX, SGW, SOUT = 32, 36, 40, 44, 48, 52, 56, 60, 64
    sW, sH, sJ, sN, sWQO, sKO, sT0, sT1, sT2, sT3 = 68, 69, 70, 71, 72, 73, 74, 75, 76, 77
    sPR = 78
    sCNT, sKOFF, sSLOT, sCQ, sCH = 84, 85, 86, 87, 88
    sST = 90
    stamps = []
    def stamp(name):
        if not o["STAMP"]: return
        k = len(stamps); assert k < 12
        stamps.append(name)
        e("s_memrealtime s[%d:%d]" % (sT2, sT2 + 1))
        e("s_waitcnt lgkmcnt(0)")
        e("s_mov_b32 s%d, s%d" % (sST + k, sT2))

    nxt = [1]
    def al(n=1, align=1):
        while nxt[0] % align: nxt[0] += 1
        r = nxt[0]; nxt[0] += n; return r
    vLane, vG, vC = al(), al(), al()
    vWA, vWB = al(), al()
    vKA, vKB = al(), al()
    vCol12, vP2, vPoll, vPub, vLW3, vLW4, vT4 = al(), al(), al(), al(), al(), al(), al()
    vOffB = al()
    acc = al(12, 2)
    Q = al(6, 2)
    X0lo, X0hi, X1lo, X1hi = Q, Q + 1, Q + 2, Q + 3
    S = al(6); PL = al(6)
    P = al(4, 2); R = al(2, 2)
    T = al(8, 2)
    WO4 = al(24, 2); WO1 = al(6)
    SL = al(6 * NS, 2)
    nv = nxt[0]; assert nv <= 256, nv
    def slot(i): return SL + 6 * i

    PART1, QBUF, WMAX, PART2, PART3 = 0, 6144, 6656, 8704, 16896
    LDS = PART3 + 6144
    P1, P2, DBGO = 0, 262144, 1 << 20
    OOB = 0x40000000
    LOG2E = 0x3fb8aa3b
    SCALE = 0x3d93cd3a
    knt = " nt" if o["KNT"] else ""; vnt = " nt" if o["VNT"] else ""
    wont = " nt" if o["WONT"] else ""; wqnt = " nt" if o["WQNT"] else ""

    def srd(d, base, size):
        if isinstance(size, int): e("s_mov_b32 s%d, 0x%x" % (d + 2, size))
        else: e("s_mov_b32 s%d, %s" % (d + 2, size))
        e("s_mov_b32 s%d, 0x20000" % (d + 3))

    e("s_cmp_ge_u32 s2, 256")
    e("s_cbranch_scc1 L_exit")
    e("s_load_dwordx16 s[4:19], s[0:1], 0")
    e("s_load_dwordx8 s[20:27], s[0:1], 64")
    e("s_load_dwordx4 s[28:31], s[0:1], 96")
    e("v_lshrrev_b32 v%d, 6, v0" % T)
    e("v_and_b32 v%d, 63, v0" % vLane)
    e("v_readfirstlane_b32 s%d, v%d" % (sW, T))
    e("v_and_b32 v%d, 15, v0" % vC)
    e("v_lshrrev_b32 v%d, 4, v%d" % (vG, vLane))
    e("s_and_b32 s%d, s2, 7" % sT0)
    e("s_lshl_b32 s%d, s%d, 2" % (sT0, sT0))
    e("s_bfe_u32 s%d, s2, 0x20003" % sT1)
    e("s_add_u32 s%d, s%d, s%d" % (sH, sT0, sT1))
    e("s_lshr_b32 s%d, s2, 5" % sJ)
    e("s_lshl_b32 s%d, s%d, 3" % (sT0, sJ))
    e("s_add_u32 s%d, s%d, s%d" % (sT0, sT0, sW))
    e("s_add_u32 s%d, s%d, 2" % (sT1, sT0))
    e("s_mul_i32 s%d, s%d, 171" % (sT1, sT1))
    e("s_lshr_b32 s%d, s%d, 9" % (sT1, sT1))
    e("s_mul_i32 s%d, s%d, 21" % (sT2, sT0))
    e("s_add_u32 s%d, s%d, s%d" % (sT2, sT2, sT1))
    e("s_add_u32 s%d, s%d, 3" % (sT3, sT0))
    e("s_mul_i32 s%d, s%d, 171" % (sT3, sT3))
    e("s_lshr_b32 s%d, s%d, 9" % (sT3, sT3))
    e("s_sub_u32 s%d, s%d, s%d" % (sT3, sT3, sT1))
    e("s_add_u32 s%d, s%d, 21" % (sN, sT3))
    e("s_mul_i32 s%d, s%d, 1710" % (sWQO, sJ))
    e("s_lshr_b32 s%d, s%d, 9" % (sWQO, sWQO))
    e("s_cmp_lt_u32 s%d, 6" % sJ)
    e("s_cbranch_scc1 L_isB")
    e("s_lshl_b32 s%d, s%d, 4" % (sT2, sT0))
    e("s_mov_b32 s%d, 16" % sN)
    e("s_sub_u32 s%d, s%d, 6" % (sT1, sJ))
    e("s_mul_i32 s%d, s%d, 10" % (sWQO, sT1))
    lab("L_isB")
    e("s_mul_i32 s%d, s%d, 1536" % (sT2, sT2))
    e("s_mul_i32 s%d, s%d, 0x180000" % (sT1, sH))
    e("s_add_u32 s%d, s%d, s%d" % (sKO, sT1, sT2))
    e("s_mul_i32 s%d, s%d, 20" % (sT0, sW))
    e("s_add_u32 s%d, s%d, s%d" % (sWQO, sWQO, sT0))
    e("s_sub_u32 s%d, s%d, 160" % (sT0, sWQO))
    e("s_min_u32 s%d, s%d, s%d" % (sWQO, sWQO, sT0))
    e("v_add_u32 v%d, s%d, v%d" % (T, sWQO, vC))
    e("v_add_u32 v%d, 16, v%d" % (T + 1, T))
    e("v_subrev_u32 v%d, 160, v%d" % (T + 2, T))
    e("v_subrev_u32 v%d, 160, v%d" % (T + 3, T + 1))
    e("v_min_u32 v%d, v%d, v%d" % (T, T, T + 2))
    e("v_min_u32 v%d, v%d, v%d" % (T + 1, T + 1, T + 3))
    e("v_lshlrev_b32 v%d, 1, v%d" % (T + 2, vG))
    e("v_lshl_add_u32 v%d, v%d, 3, v%d" % (T, T, T + 2))
    e("v_lshl_add_u32 v%d, v%d, 3, v%d" % (T + 1, T + 1, T + 2))
    e("v_mul_u32_u24 v%d, 0x3000, v%d" % (T + 2, vG))
    e("v_lshl_add_u32 v%d, v%d, 4, v%d" % (vWA, vC, T + 2))
    e("v_lshl_add_u32 v%d, v%d, 3, v%d" % (vWB, vC, T + 2))
    e("v_add_u32 v%d, 0x100, v%d" % (vWB, vWB))
    e("v_mul_u32_u24 v%d, 0x180, v%d" % (T + 2, vG))
    e("v_lshl_add_u32 v%d, v%d, 4, v%d" % (vKA, vC, T + 2))
    e("v_lshl_add_u32 v%d, v%d, 3, v%d" % (vKB, vC, T + 2))
    e("v_add_u32 v%d, 0x100, v%d" % (vKB, vKB))
    e("s_mul_i32 s%d, s%d, 49152" % (sWQO, sWQO))
    e("s_mul_i32 s%d, s%d, 384" % (sT0, sH))
    e("s_mul_i32 s%d, s%d, 1536" % (sT3, sN))
    e("s_cmp_lt_u32 s%d, 6" % sJ)
    e("s_waitcnt lgkmcnt(0)")
    e("s_cselect_b32 s%d, s%d, s%d" % (SWQ, pBWQ, pAWQ))
    e("s_cselect_b32 s%d, s%d, s%d" % (SWQ + 1, pBWQ + 1, pAWQ + 1))
    e("s_cselect_b32 s%d, s%d, s%d" % (SK, pBK, pAK))
    e("s_cselect_b32 s%d, s%d, s%d" % (SK + 1, pBK + 1, pAK + 1))
    e("s_cselect_b32 s%d, s%d, s%d" % (SV, pBV, pAV))
    e("s_cselect_b32 s%d, s%d, s%d" % (SV + 1, pBV + 1, pAV + 1))
    e("s_mov_b32 s%d, s%d" % (SX, pAX)); e("s_mov_b32 s%d, s%d" % (SX + 1, pAX + 1))
    srd(SX, None, 1280)
    e("buffer_load_ushort v%d, v%d, s[%d:%d], 0 offen" % (X0lo, T, SX, SX + 3)); vm.issue("x")
    e("buffer_load_ushort v%d, v%d, s[%d:%d], 0 offen" % (X1lo, T + 1, SX, SX + 3)); vm.issue("x")
    e("s_add_u32 s%d, s%d, s%d" % (SWQ, SWQ, sT0))
    e("s_addc_u32 s%d, s%d, 0" % (SWQ + 1, SWQ + 1))
    e("s_sub_u32 s%d, 0x%x, s%d" % (SWQ + 2, 640 * 12288, sT0))
    e("s_mov_b32 s%d, 0x20000" % (SWQ + 3))
    e("s_add_u32 s%d, s%d, s%d" % (SK, SK, sKO))
    e("s_addc_u32 s%d, s%d, 0" % (SK + 1, SK + 1))
    srd(SK, None, "s%d" % sT3)
    e("s_add_u32 s%d, s%d, s%d" % (SV, SV, sKO))
    e("s_addc_u32 s%d, s%d, 0" % (SV + 1, SV + 1))
    srd(SV, None, "s%d" % sT3)
    e("s_mov_b32 s%d, s%d" % (SWS, pWS)); e("s_mov_b32 s%d, s%d" % (SWS + 1, pWS + 1))
    srd(SWS, None, 0x10000000)
    e("s_mov_b32 s%d, s%d" % (SDBG, pDBG)); e("s_mov_b32 s%d, s%d" % (SDBG + 1, pDBG + 1))
    srd(SDBG, None, 256)
    e("s_and_b32 s%d, s%d, 3" % (sCQ, sJ))
    e("s_add_u32 s%d, s%d, 32" % (sT0, sH))
    e("s_cmp_lt_u32 s%d, 4" % sJ)
    e("s_cselect_b32 s%d, s%d, s%d" % (sSLOT, sT0, sH))
    e("s_cselect_b32 s%d, s%d, s%d" % (SWO, pBWO, pAWO))
    e("s_cselect_b32 s%d, s%d, s%d" % (SWO + 1, pBWO + 1, pAWO + 1))
    if o["STAMP"]:
        for k in range(12): e("s_mov_b32 s%d, 0" % (sST + k))
    stamp("start")
    e("s_cmp_lg_u32 s%d, 7" % sW)
    e("s_cbranch_scc1 L_noclear")
    for k in range(4): e("v_mov_b32 v%d, -1" % (P + k))
    e("s_lshl_b32 s%d, s%d, 3" % (sT0, sH))
    e("s_add_u32 s%d, s%d, s%d" % (sT0, sT0, sJ))
    e("s_lshl_b32 s%d, s%d, 10" % (sT0, sT0))
    e("v_lshlrev_b32 v%d, 4, v%d" % (T + 2, vLane))
    e("buffer_store_dwordx4 v[%d:%d], v%d, s[%d:%d], s%d offen sc1" % (P, P + 3, T + 2, SWS, SWS + 3, sT0)); vm.issue("clr", "w7")
    e("s_mul_i32 s%d, s%d, 40960" % (sT0, sCQ))
    e("s_lshl_b32 s%d, s%d, 4" % (sT1, sSLOT))
    e("s_add_u32 s%d, s%d, s%d" % (sT0, sT0, sT1))
    e("s_add_u32 s%d, s%d, %d" % (sT0, sT0, P2))
    e("v_lshlrev_b32 v%d, 10, v%d" % (T + 3, vLane))
    e("v_mov_b32 v%d, 0x%x" % (T + 4, OOB))
    e("v_cmp_gt_u32 vcc, 40, v%d" % vLane)
    e("v_cndmask_b32 v%d, v%d, v%d, vcc" % (T + 3, T + 4, T + 3))
    e("buffer_store_dwordx4 v[%d:%d], v%d, s[%d:%d], s%d offen sc1" % (P, P + 3, T + 3, SWS, SWS + 3, sT0)); vm.issue("clr", "w7")
    lab("L_noclear")

    kstate = {"off": None}
    def kv_load(srdreg, grp, sl, nt, tag):
        base = (grp // 3) * 4608; imm = (grp % 3) * 1536
        if base == 0: so = "0"
        else:
            if kstate["off"] != base:
                e("s_mov_b32 s%d, %d" % (sKOFF, base)); kstate["off"] = base
            so = "s%d" % sKOFF
        e("buffer_load_dwordx4 v[%d:%d], v%d, s[%d:%d], %s offen offset:%d%s" % (sl, sl + 3, vKA, srdreg, srdreg + 3, so, imm, nt)); vm.issue(tag)
        e("buffer_load_dwordx2 v[%d:%d], v%d, s[%d:%d], %s offen offset:%d%s" % (sl + 4, sl + 5, vKB, srdreg, srdreg + 3, so, imm, nt)); vm.issue(tag)
    def kslot(t): return slot(NWQ + t) if t < E else slot(t - E)
    kpos = [int(x) for x in o["KPOS"].split("_")] if o["KPOS"] else [((k + 1) * NWQ) // (E + 1) for k in range(E)]
    assert len(kpos) == E
    kk = 0
    for i in range(NWQ + 1):
        while kk < E and kpos[kk] <= i:
            kv_load(SK, kk, kslot(kk), knt, "k%d" % kk); kk += 1
        if i == NWQ: break
        sl = slot(i)
        e("buffer_load_dwordx4 v[%d:%d], v%d, s[%d:%d], s%d offen%s" % (sl, sl + 3, vWA, SWQ, SWQ + 3, sWQO, wqnt)); vm.issue("w%d" % i)
        e("buffer_load_dwordx2 v[%d:%d], v%d, s[%d:%d], s%d offen%s" % (sl + 4, sl + 5, vWB, SWQ, SWQ + 3, sWQO, wqnt)); vm.issue("w%d" % i)
        if i < NWQ - 1:
            e("s_add_u32 s%d, s%d, 49152" % (sWQO, sWQO))
            e("s_sub_u32 s%d, s%d, 0x%x" % (sT0, sWQO, 160 * 49152))
            e("s_min_u32 s%d, s%d, s%d" % (sWQO, sWQO, sT0))
    assert kk == E
    stamp("issued")

    c("address setup")
    for k in range(12): e("v_mov_b32 v%d, 0" % (acc + k))
    e("v_lshlrev_b32 v%d, 2, v0" % vT4)
    e("v_lshlrev_b32 v%d, 2, v%d" % (T, vLane))
    e("s_mul_i32 s%d, s%d, 768" % (sT0, sW))
    e("v_add_u32 v%d, s%d, v%d" % (vLW3, sT0, T))
    e("s_lshl_b32 s%d, s%d, 10" % (sT0, sW))
    e("v_add_u32 v%d, s%d, v%d" % (vLW4, sT0, T))
    e("v_mul_u32_u24 v%d, 3, v%d" % (T, vG))
    e("v_add_u32 v%d, s%d, v%d" % (T, sW, T))
    e("v_lshl_add_u32 v%d, v%d, 3, v%d" % (T + 1, vC, T))
    e("v_lshl_add_u32 v%d, v%d, 2, v%d" % (T + 2, vC, T))
    e("v_add_u32 v%d, 120, v%d" % (T + 2, T + 2))
    e("v_cmp_gt_u32 vcc, 8, v%d" % T)
    e("v_cndmask_b32 v%d, v%d, v%d, vcc" % (vCol12, T + 2, T + 1))
    e("s_lshl_b32 s%d, s%d, 3" % (sT0, sH))
    e("s_add_u32 s%d, s%d, s%d" % (sT1, sT0, sJ))
    e("s_lshl_b32 s%d, s%d, 10" % (sT1, sT1))
    e("v_lshlrev_b32 v%d, 2, v%d" % (T, vCol12))
    e("v_lshlrev_b32 v%d, 2, v0" % (T + 1))
    e("v_cmp_gt_u32 vcc, 192, v0")
    e("v_cndmask_b32 v%d, v%d, v%d, vcc" % (T, T + 1, T))
    e("v_add_u32 v%d, s%d, v%d" % (T, sT1, T))
    e("v_mov_b32 v%d, 0x%x" % (T + 1, OOB))
    e("v_cmp_gt_u32 vcc, 194, v0")
    e("v_cndmask_b32 v%d, v%d, v%d, vcc" % (vPub, T + 1, T))
    for k in range(6):
        e("s_cmp_lt_u32 s%d, 4" % sJ)
        e("s_cselect_b32 s%d, %d, %d" % (sT1, k, 6 + (k & 1)))
        e("s_add_u32 s%d, s%d, s%d" % (sT1, sT1, sT0))
        e("s_lshl_b32 s%d, s%d, 10" % (sPR + k, sT1))
    e("s_mul_i32 s%d, s%d, 96" % (sT0, sW))
    e("v_lshlrev_b32 v%d, 2, v%d" % (T, vG))
    e("v_lshl_add_u32 v%d, v%d, 4, v%d" % (T, vC, T))
    e("v_add_u32 v%d, s%d, v%d" % (T, sT0, T))
    e("v_mov_b32 v%d, 0x304" % (T + 1))
    e("v_mov_b32 v%d, 0x300" % (T + 2))
    e("v_cmp_eq_u32 vcc, 6, v%d" % vC)
    e("v_cndmask_b32 v%d, v%d, v%d, vcc" % (T + 1, T + 1, T + 2))
    e("v_cmp_gt_u32 vcc, 6, v%d" % vC)
    e("v_cndmask_b32 v%d, v%d, v%d, vcc" % (vPoll, T + 1, T))
    e("s_cmp_lt_u32 s%d, 2" % sW)
    e("s_cselect_b32 s%d, 1, 0" % sT0)
    e("v_and_b32 v%d, s%d, v%d" % (T, sT0, vG))
    e("v_lshrrev_b32 v%d, 1, v%d" % (T + 1, vG))
    e("v_mul_u32_u24 v%d, 5, v%d" % (T + 1, T + 1))
    e("v_add_u32 v%d, v%d, v%d" % (T, T, T + 1))
    e("s_lshl_b32 s%d, s%d, 1" % (sT0, sW))
    e("v_add_u32 v%d, s%d, v%d" % (T, sT0, T))
    e("v_lshl_add_u32 v%d, v%d, 3, v%d" % (T + 1, vC, T))
    e("v_lshl_add_u32 v%d, v%d, 1, v%d" % (T + 2, vC, T))
    e("v_add_u32 v%d, 120, v%d" % (T + 2, T + 2))
    e("v_cmp_gt_u32 vcc, 8, v%d" % T)
    e("v_cndmask_b32 v%d, v%d, v%d, vcc" % (T, T + 2, T + 1))
    e("v_lshrrev_b32 v%d, 2, v%d" % (T + 1, T))
    e("v_and_b32 v%d, 3, v%d" % (T + 2, T))
    e("v_lshlrev_b32 v%d, 10, v%d" % (T + 1, T + 1))
    e("v_lshl_add_u32 v%d, v%d, 2, v%d" % (T + 1, T + 2, T + 1))
    e("s_mul_i32 s%d, s%d, 40960" % (sT0, sCQ))
    e("s_lshl_b32 s%d, s%d, 4" % (sT1, sSLOT))
    e("s_add_u32 s%d, s%d, s%d" % (sT0, sT0, sT1))
    e("s_add_u32 s%d, s%d, %d" % (sT0, sT0, P2))
    e("v_add_u32 v%d, s%d, v%d" % (vP2, sT0, T + 1))
    e("v_lshrrev_b32 v%d, 1, v%d" % (T, vC))
    e("v_and_b32 v%d, 2, v%d" % (T, T))
    e("v_lshrrev_b32 v%d, 3, v%d" % (T + 1, vC))
    e("v_or_b32 v%d, v%d, v%d" % (vOffB, T, T + 1))
    e("s_mul_i32 s%d, s%d, 192" % (sT0, sH))
    e("s_mul_i32 s%d, s%d, 24" % (sT1, sW))
    e("s_add_u32 s%d, s%d, s%d" % (sT0, sT0, sT1))
    e("s_mul_i32 s%d, s%d, 1280" % (sT0, sT0))
    e("s_mul_i32 s%d, s%d, 320" % (sT1, sCQ))
    e("s_add_u32 s%d, s%d, s%d" % (sT0, sT0, sT1))
    e("s_add_u32 s%d, s%d, s%d" % (SWO, SWO, sT0))
    e("s_addc_u32 s%d, s%d, 0" % (SWO + 1, SWO + 1))
    srd(SWO, None, 23 * 1280 + 320)

    def dot12(sel_lo, sel_hi, sl, bc, n=6, regs=None):
        for d in range(n):
            r = regs[d] if regs else sl + d
            e("v_dot2c_f32_bf16_dpp v%d, v%d, v%d row_newbcast:%d row_mask:0xf bank_mask:0xf" % (acc + 2 * d, sel_lo, r, bc))
            e("v_dot2c_f32_bf16_dpp v%d, v%d, v%d row_newbcast:%d row_mask:0xf bank_mask:0xf" % (acc + 2 * d + 1, sel_hi, r, bc))
    for i in range(NWQ):
        vm.wait("w%d" % i)
        if i == 0:
            e("v_lshlrev_b32 v%d, 16, v%d" % (X0hi, X0lo))
            e("v_lshlrev_b32 v%d, 16, v%d" % (X1hi, X1lo))
            e("s_cmp_lg_u32 s%d, 7" % sW)
            e("s_cbranch_scc1 L_noflag")
            e("v_mov_b32 v%d, 1" % T)
            e("s_mov_b64 exec, 1")
            e("buffer_store_byte v%d, off, s[%d:%d], s2 sc1" % (T, SDBG, SDBG + 3)); vm.issue("flag", "w7")
            e("s_mov_b64 exec, -1")
            lab("L_noflag")
        if i < 16: dot12(X0lo, X0hi, slot(i), i)
        else: dot12(X1lo, X1hi, slot(i), i - 16)
        if E + i < NG: kv_load(SK, E + i, slot(i), knt, "k%d" % (E + i))
    stamp("wqdone")

    def reduce12(lds_reg, base, stride_planes=256):
        for k in range(6): e("v_permlane32_swap_b32 v%d, v%d" % (acc + k, acc + k + 6))
        for k in range(6): e("v_add_f32 v%d, v%d, v%d" % (acc + k, acc + k, acc + k + 6))
        for k in range(3): e("v_permlane16_swap_b32 v%d, v%d" % (acc + k, acc + k + 3))
        for k in range(3): e("v_add_f32 v%d, v%d, v%d" % (acc + k, acc + k, acc + k + 3))
        for k in range(3): e("ds_write_b32 v%d, v%d offset:%d" % (lds_reg, acc + k, base + 256 * k))
    def sum8(dst, base, wstride):
        for k in range(4):
            e("ds_read2st64_b32 v[%d:%d], v%d offset0:%d offset1:%d" % (T + 2 * k, T + 2 * k + 1, vT4, base // 256 + 2 * k * wstride, base // 256 + (2 * k + 1) * wstride))
        e("s_waitcnt lgkmcnt(0)")
        e("v_add_f32 v%d, v%d, v%d" % (T, T, T + 1))
        e("v_add_f32 v%d, v%d, v%d" % (T + 2, T + 2, T + 3))
        e("v_add_f32 v%d, v%d, v%d" % (T + 4, T + 4, T + 5))
        e("v_add_f32 v%d, v%d, v%d" % (T + 6, T + 6, T + 7))
        e("v_add_f32 v%d, v%d, v%d" % (T, T, T + 2))
        e("v_add_f32 v%d, v%d, v%d" % (T + 4, T + 4, T + 6))
        e("v_add_f32 v%d, v%d, v%d" % (dst, T, T + 4))

    reduce12(vLW3, PART1)
    e("s_waitcnt lgkmcnt(0)")
    e("s_barrier")
    e("s_cmp_ge_u32 s%d, 3" % sW)
    e("s_cbranch_scc1 L_noq")
    assert PART1 % 256 == 0
    sum8(T, PART1, 3)
    e("v_cvt_pk_bf16_f32 v%d, v%d, v%d" % (T, T, T))
    e("v_lshlrev_b32 v%d, 1, v%d" % (T + 1, vCol12))
    e("ds_write_b16 v%d, v%d offset:%d" % (T + 1, T, QBUF))
    e("s_waitcnt lgkmcnt(0)")
    lab("L_noq")
    e("s_barrier")
    e("v_lshlrev_b32 v%d, 4, v%d" % (T, vC))
    e("v_lshlrev_b32 v%d, 3, v%d" % (T + 1, vC))
    e("ds_read_b128 v[%d:%d], v%d offset:%d" % (Q, Q + 3, T, QBUF))
    e("ds_read_b64 v[%d:%d], v%d offset:%d" % (Q + 4, Q + 5, T + 1, QBUF + 256))
    vFl = R
    vFl = PL + 5
    e("s_cmp_lg_u32 s%d, 0" % sW)
    e("s_cbranch_scc1 L_nofl")
    e("v_lshlrev_b32 v%d, 2, v%d" % (T + 2, vLane))
    e("buffer_load_dword v%d, v%d, s[%d:%d], 0 offen sc1" % (vFl, T + 2, SDBG, SDBG + 3)); vm.issue("fl", "w0")
    lab("L_nofl")
    e("s_waitcnt lgkmcnt(0)")
    if o["DUMP"]:
        e("s_lshl_b32 s%d, s2, 10" % sT0)
        e("s_add_u32 s%d, s%d, %d" % (sT0, sT0, DBGO))
        e("v_lshlrev_b32 v%d, 4, v%d" % (T, vC))
        e("v_lshlrev_b32 v%d, 3, v%d" % (T + 1, vC))
        e("buffer_store_dwordx4 v[%d:%d], v%d, s[%d:%d], s%d offen" % (Q, Q + 3, T, SWS, SWS + 3, sT0)); vm.issue("dump")
        e("buffer_store_dwordx2 v[%d:%d], v%d, s[%d:%d], s%d offen offset:256" % (Q + 4, Q + 5, T + 1, SWS, SWS + 3, sT0)); vm.issue("dump")
    stamp("qready")

    pos = [0, 8, 4, 12]
    for t in range(NG):
        vm.wait("k%d" % t)
        sl = kslot(t); p = P + (t % 4)
        e("v_mov_b32 v%d, 0" % p)
        for d in range(6): e("v_dot2c_f32_bf16 v%d, v%d, v%d" % (p, sl + d, Q + d))
        kv_load(SV, t, sl, vnt, "v%d" % t)
        if t % 4 == 3 or t == NG - 1:
            q = t // 4
            for k in range(t % 4 + 1, 4): e("v_mov_b32 v%d, 0" % (P + k))
            D = "row_mask:0xf bank_mask:0xf"
            e("v_add_f32_dpp v%d, v%d, v%d row_ror:8 %s" % (R, P, P, D))
            e("v_add_f32_dpp v%d, v%d, v%d row_ror:8 %s" % (R + 1, P + 2, P + 2, D))
            e("v_add_f32_dpp v%d, v%d, v%d row_ror:8 row_mask:0xf bank_mask:0xc" % (R, P + 1, P + 1))
            e("v_add_f32_dpp v%d, v%d, v%d row_ror:8 row_mask:0xf bank_mask:0xc" % (R + 1, P + 3, P + 3))
            e("v_add_f32_dpp v%d, v%d, v%d row_half_mirror %s" % (S + q, R, R, D))
            e("v_add_f32_dpp v%d, v%d, v%d row_half_mirror row_mask:0xf bank_mask:0xa" % (S + q, R + 1, R + 1))
            e("v_add_f32_dpp v%d, v%d, v%d quad_perm:[2,3,0,1] %s" % (S + q, S + q, S + q, D))
            e("v_add_f32_dpp v%d, v%d, v%d quad_perm:[1,0,3,2] %s" % (S + q, S + q, S + q, D))
    e("v_mul_u32_u24 v%d, 0x500, v%d" % (T, vG))
    e("v_lshl_add_u32 v%d, v%d, 2, v%d" % (T + 1, vC, T))
    e("v_lshl_add_u32 v%d, v%d, 4, v%d" % (T, vC, T))
    e("v_add_u32 v%d, 0x100, v%d" % (T + 1, T + 1))
    for i in range(6):
        if i: e("s_mov_b32 s%d, %d" % (sT0, i * 5120))
        so = "s%d" % sT0 if i else "0"
        e("buffer_load_dwordx4 v[%d:%d], v%d, s[%d:%d], %s offen%s" % (WO4 + 4 * i, WO4 + 4 * i + 3, T, SWO, SWO + 3, so, wont)); vm.issue("wo")
        e("buffer_load_dword v%d, v%d, s[%d:%d], %s offen%s" % (WO1 + i, T + 1, SWO, SWO + 3, so, wont)); vm.issue("wo")
    e("s_mov_b32 s%d, 0x%x" % (sT0, SCALE))
    for q in range(6): e("v_cvt_pk_bf16_f32 v%d, 0, v%d" % (S + q, S + q))
    for q in range(6): e("v_mul_f32 v%d, s%d, v%d" % (S + q, sT0, S + q))
    for q in range(6): e("v_cvt_pk_bf16_f32 v%d, 0, v%d" % (S + q, S + q))
    e("v_mov_b32 v%d, 0xff800000" % T)
    for q in (4, 5):
        e("s_sub_i32 s%d, s%d, %d" % (sT0, sN, 4 * q))
        e("v_cmp_gt_i32 vcc, s%d, v%d" % (sT0, vOffB))
        e("v_cndmask_b32 v%d, v%d, v%d, vcc" % (S + q, T, S + q))
    e("v_max3_f32 v%d, v%d, v%d, v%d" % (T, S, S + 1, S + 2))
    e("v_max3_f32 v%d, v%d, v%d, v%d" % (T + 1, S + 3, S + 4, S + 5))
    e("v_max_f32 v%d, v%d, v%d" % (T, T, T + 1))
    D = "row_mask:0xf bank_mask:0xf"
    def allred(r, tmp, op):
        e("%s_dpp v%d, v%d, v%d row_ror:4 %s" % (op, r, r, r, D))
        e("%s_dpp v%d, v%d, v%d row_ror:8 %s" % (op, r, r, r, D))
        e("v_mov_b32 v%d, v%d" % (tmp, r))
        e("v_permlane16_swap_b32 v%d, v%d" % (r, tmp))
        e("%s v%d, v%d, v%d" % (op, r, r, tmp))
        e("v_mov_b32 v%d, v%d" % (tmp, r))
        e("v_permlane32_swap_b32 v%d, v%d" % (r, tmp))
        e("%s v%d, v%d, v%d" % (op, r, r, tmp))
    allred(T, T + 1, "v_max_f32")
    e("ds_write_b32 v%d, v%d offset:%d" % (vT4, T, WMAX))
    e("s_cmp_lg_u32 s%d, 0" % sW)
    e("s_cbranch_scc1 L_flok")
    vm.wait("fl", "w0", force=True)
    e("v_cmp_ne_u32 vcc, 0x01010101, v%d" % vFl)
    e("s_cbranch_vccz L_flok")
    e("s_mov_b32 s%d, %d" % (sCNT, o["LIMIT"]))
    e("v_lshlrev_b32 v%d, 2, v%d" % (T + 2, vLane))
    lab("L_flspin")
    e("s_sleep 8")
    e("buffer_load_dword v%d, v%d, s[%d:%d], 0 offen sc1" % (vFl, T + 2, SDBG, SDBG + 3))
    e("s_waitcnt vmcnt(0)")
    e("v_cmp_ne_u32 vcc, 0x01010101, v%d" % vFl)
    e("s_cbranch_vccz L_flok")
    e("s_sub_u32 s%d, s%d, 1" % (sCNT, sCNT))
    e("s_cmp_lg_u32 s%d, 0" % sCNT)
    e("s_cbranch_scc1 L_flspin")
    lab("L_flok")
    e("s_waitcnt lgkmcnt(0)")
    stamp("kdone")
    e("s_barrier")
    e("v_lshlrev_b32 v%d, 2, v%d" % (R, vLane))
    for k in range(4):
        e("ds_read2st64_b32 v[%d:%d], v%d offset0:%d offset1:%d" % (T + 2 * k, T + 2 * k + 1, R, WMAX // 256 + 2 * k, WMAX // 256 + 2 * k + 1))
    assert WMAX % 256 == 0
    for k in range(12): e("v_mov_b32 v%d, 0" % (acc + k))
    e("s_waitcnt lgkmcnt(0)")
    vM = R + 1
    e("v_max3_f32 v%d, v%d, v%d, v%d" % (T, T, T + 1, T + 2))
    e("v_max3_f32 v%d, v%d, v%d, v%d" % (T + 3, T + 3, T + 4, T + 5))
    e("v_max3_f32 v%d, v%d, v%d, v%d" % (T, T, T + 6, T + 7))
    e("v_max_f32 v%d, v%d, v%d" % (vM, T, T + 3))
    e("s_mov_b32 s%d, 0x%x" % (sT0, LOG2E))
    for q in range(6): e("v_sub_f32 v%d, v%d, v%d" % (S + q, S + q, vM))
    for q in range(6): e("v_mul_f32 v%d, s%d, v%d" % (S + q, sT0, S + q))
    for q in range(6): e("v_exp_f32 v%d, v%d" % (S + q, S + q))
    for q in range(6): e("v_cvt_pk_bf16_f32 v%d, 0, v%d" % (S + q, S + q))
    for q in range(6): e("v_lshrrev_b32 v%d, 16, v%d" % (PL + q, S + q))
    e("v_add_f32 v%d, v%d, v%d" % (T, S, S + 1))
    e("v_add_f32 v%d, v%d, v%d" % (T + 1, S + 2, S + 3))
    e("v_add_f32 v%d, v%d, v%d" % (T + 2, S + 4, S + 5))
    e("v_add_f32 v%d, v%d, v%d" % (T, T, T + 1))
    e("v_add_f32 v%d, v%d, v%d" % (T, T, T + 2))
    allred(T, T + 1, "v_add_f32")
    e("ds_write_b32 v%d, v%d offset:%d" % (vLW4, T, PART2 + 768))

    for t in range(NG):
        vm.wait("v%d" % t)
        dot12(PL + t // 4, S + t // 4, kslot(t), pos[t % 4])
    stamp("vdone")
    reduce12(vLW4, PART2)
    e("s_waitcnt lgkmcnt(0)")
    e("s_barrier")
    e("s_cmp_ge_u32 s%d, 4" % sW)
    e("s_cbranch_scc1 L_nopub")
    assert PART2 % 256 == 0
    sum8(T, PART2, 4)
    e("v_cmp_eq_u32 vcc, 0xc0, v0")
    e("v_cndmask_b32 v%d, v%d, v%d, vcc" % (T, T, vM))
    e("buffer_store_dword v%d, v%d, s[%d:%d], 0 offen sc1" % (T, vPub, SWS, SWS + 3)); vm.issue("pub", "pubw")
    lab("L_nopub")
    stamp("pub1")

    RR = SL
    for k in range(10): e("v_mov_b32 v%d, 0" % (acc + k))
    e("s_mov_b32 s%d, %d" % (sCNT, o["LIMIT"]))
    lab("L_poll1")
    for k in range(6):
        e("buffer_load_dword v%d, v%d, s[%d:%d], s%d offen sc1" % (RR + k, vPoll, SWS, SWS + 3, sPR + k))
    e("s_waitcnt vmcnt(0)")
    e("v_max3_u32 v%d, v%d, v%d, v%d" % (T, RR, RR + 1, RR + 2))
    e("v_max3_u32 v%d, v%d, v%d, v%d" % (T + 1, RR + 3, RR + 4, RR + 5))
    e("v_max_u32 v%d, v%d, v%d" % (T, T, T + 1))
    e("v_cmp_eq_u32 vcc, -1, v%d" % T)
    e("s_cbranch_vccz L_got1")
    if o["SLEEP1"]: e("s_sleep %d" % o["SLEEP1"])
    e("s_sub_u32 s%d, s%d, 1" % (sCNT, sCNT))
    e("s_cmp_lg_u32 s%d, 0" % sCNT)
    e("s_cbranch_scc1 L_poll1")
    lab("L_got1")
    vm.all_done()
    stamp("got1")
    e("v_max3_f32 v%d, v%d, v%d, v%d" % (T, RR, RR + 1, RR + 2))
    e("v_max3_f32 v%d, v%d, v%d, v%d" % (T + 1, RR + 3, RR + 4, RR + 5))
    e("v_max_f32 v%d, v%d, v%d" % (T, T, T + 1))
    e("v_mov_b32_dpp v%d, v%d row_newbcast:6 %s" % (T + 1, T, D))
    EK = SL + 6
    for k in range(6): e("v_sub_f32_dpp v%d, v%d, v%d row_newbcast:6 %s" % (EK + k, RR + k, T + 1, D))
    e("s_mov_b32 s%d, 0x%x" % (sT0, LOG2E))
    for k in range(6): e("v_mul_f32 v%d, s%d, v%d" % (EK + k, sT0, EK + k))
    for k in range(6): e("v_exp_f32 v%d, v%d" % (EK + k, EK + k))
    e("v_mul_f32 v%d, v%d, v%d" % (T, EK, RR))
    e("v_mul_f32 v%d, v%d, v%d" % (T + 1, EK + 1, RR + 1))
    e("v_fmac_f32 v%d, v%d, v%d" % (T, EK + 2, RR + 2))
    e("v_fmac_f32 v%d, v%d, v%d" % (T + 1, EK + 3, RR + 3))
    e("v_fmac_f32 v%d, v%d, v%d" % (T, EK + 4, RR + 4))
    e("v_fmac_f32 v%d, v%d, v%d" % (T + 1, EK + 5, RR + 5))
    e("v_add_f32 v%d, v%d, v%d" % (T, T, T + 1))
    e("v_rcp_f32_dpp v%d, v%d row_newbcast:7 %s" % (T + 1, T, D))
    e("v_mul_f32 v%d, v%d, v%d" % (T, T, T + 1))
    e("v_cvt_pk_bf16_f32 v%d, 0, v%d" % (T + 3, T))
    e("v_lshrrev_b32 v%d, 16, v%d" % (T + 2, T + 3))
    for i in range(6):
        dot12(T + 2, T + 3, None, i, n=5, regs=[WO4 + 4 * i + d for d in range(4)] + [WO1 + i])
    for k in range(5): e("v_permlane32_swap_b32 v%d, v%d" % (acc + k, acc + k + 5))
    for k in range(5): e("v_add_f32 v%d, v%d, v%d" % (acc + k, acc + k, acc + k + 5))
    e("v_mov_b32 v%d, v%d" % (acc + 5, acc + 4))
    e("v_permlane16_swap_b32 v%d, v%d" % (acc, acc + 1))
    e("v_permlane16_swap_b32 v%d, v%d" % (acc + 2, acc + 3))
    e("v_permlane16_swap_b32 v%d, v%d" % (acc + 4, acc + 5))
    for k in range(3): e("v_add_f32 v%d, v%d, v%d" % (acc + 2 * k, acc + 2 * k, acc + 2 * k + 1))
    for k in range(3): e("ds_write_b32 v%d, v%d offset:%d" % (vLW3, acc + 2 * k, PART3 + 256 * k))
    e("s_waitcnt lgkmcnt(0)")
    e("s_barrier")
    e("s_cmp_ge_u32 s%d, 3" % sW)
    e("s_cbranch_scc1 L_nop2")
    assert PART3 % 256 == 0
    sum8(T, PART3, 3)
    e("buffer_store_dword v%d, v%d, s[%d:%d], 0 offen sc1" % (T, vP2, SWS, SWS + 3))
    stamp("pub2")
    e("s_branch L_fin")
    lab("L_nop2")
    e("s_cmp_lt_u32 s2, 192")
    e("s_cbranch_scc1 L_fin")
    e("s_sub_u32 s%d, s%d, 3" % (sT0, sW))
    e("s_lshl_b32 s%d, s%d, 6" % (sT0, sT0))
    e("s_add_u32 s%d, s%d, s2" % (sCH, sT0))
    e("s_sub_u32 s%d, s%d, 192" % (sCH, sCH))
    e("s_cmp_ge_u32 s%d, 160" % sCH)
    e("s_cbranch_scc1 L_fin")
    e("s_mov_b32 s%d, s%d" % (SGW, pGW)); e("s_mov_b32 s%d, s%d" % (SGW + 1, pGW + 1))
    srd(SGW, None, 1280)
    e("s_mov_b32 s%d, s%d" % (SOUT, pOUT)); e("s_mov_b32 s%d, s%d" % (SOUT + 1, pOUT + 1))
    srd(SOUT, None, 1280)
    XA, XB, GA, GB = SL, SL + 4, SL + 6, SL + 10
    e("v_lshlrev_b32 v%d, 4, v%d" % (T, vLane))
    e("v_lshlrev_b32 v%d, 2, v%d" % (T + 1, vLane))
    e("buffer_load_dwordx4 v[%d:%d], v%d, s[%d:%d], 0 offen" % (XA, XA + 3, T, SX, SX + 3))
    e("buffer_load_dword v%d, v%d, s[%d:%d], 0 offen offset:1024" % (XB, T + 1, SX, SX + 3))
    e("buffer_load_dwordx4 v[%d:%d], v%d, s[%d:%d], 0 offen" % (GA, GA + 3, T, SGW, SGW + 3))
    e("buffer_load_dword v%d, v%d, s[%d:%d], 0 offen offset:1024" % (GB, T + 1, SGW, SGW + 3))
    e("s_waitcnt vmcnt(0)")
    vGs = P
    e("v_mov_b32 v%d, 0" % vGs)
    e("s_mov_b32 s%d, 0xffff0000" % sT0)
    e("v_mov_b32 v%d, 0x3f803f80" % (P + 1))
    for d in range(5):
        xr = XA + d if d < 4 else XB; gr = GA + d if d < 4 else GB
        e("v_lshlrev_b32 v%d, 16, v%d" % (T, xr))
        e("v_lshlrev_b32 v%d, 16, v%d" % (T + 1, gr))
        e("v_and_b32 v%d, s%d, v%d" % (T + 2, sT0, xr))
        e("v_and_b32 v%d, s%d, v%d" % (T + 3, sT0, gr))
        e("v_mul_f32 v%d, v%d, v%d" % (T, T, T + 1))
        e("v_mul_f32 v%d, v%d, v%d" % (T + 2, T + 2, T + 3))
        e("v_cvt_pk_bf16_f32 v%d, v%d, v%d" % (T, T, T + 2))
        e("v_dot2c_f32_bf16 v%d, v%d, v%d" % (vGs, T, P + 1))
    def fullsum(r, tmp):
        e("v_add_f32_dpp v%d, v%d, v%d row_ror:1 %s" % (r, r, r, D))
        e("v_add_f32_dpp v%d, v%d, v%d row_ror:2 %s" % (r, r, r, D))
        allred(r, tmp, "v_add_f32")
    fullsum(vGs, T)
    e("v_cvt_pk_bf16_f32 v%d, 0, v%d" % (vGs, vGs))
    e("v_mul_f32 v%d, 0x%x, v%d" % (vGs, LOG2E | 0x80000000, vGs))
    e("v_exp_f32 v%d, v%d" % (vGs, vGs))
    e("v_add_f32 v%d, 1.0, v%d" % (vGs, vGs))
    e("v_rcp_f32 v%d, v%d" % (vGs, vGs))
    e("v_cvt_pk_bf16_f32 v%d, 0, v%d" % (vGs, vGs))
    e("v_sub_f32 v%d, 1.0, v%d" % (P + 1, vGs))
    e("v_cvt_pk_bf16_f32 v%d, 0, v%d" % (P + 1, P + 1))
    e("s_lshl_b32 s%d, s%d, 3" % (sT0, sCH))
    e("v_lshlrev_b32 v%d, 1, v%d" % (P + 2, vG))
    e("v_add_u32 v%d, s%d, v%d" % (P + 2, sT0, P + 2))
    e("v_mov_b32 v%d, 0x%x" % (T, OOB))
    e("v_cmp_eq_u32 vcc, 0, v%d" % vC)
    e("v_cndmask_b32 v%d, v%d, v%d, vcc" % (P + 2, T, P + 2))
    e("s_lshl_b32 s%d, s%d, 10" % (sT1, sCH))
    e("s_add_u32 s%d, s%d, %d" % (sT1, sT1, P2))
    e("v_lshlrev_b32 v%d, 4, v%d" % (P + 3, vLane))
    e("s_mov_b32 s%d, %d" % (sCNT, o["LIMIT"]))
    H = SL + 12
    lab("L_poll2")
    e("buffer_load_dwordx4 v[%d:%d], v%d, s[%d:%d], s%d offen sc1" % (H, H + 3, P + 3, SWS, SWS + 3, sT1))
    e("s_waitcnt vmcnt(0)")
    e("v_max3_u32 v%d, v%d, v%d, v%d" % (T, H, H + 1, H + 2))
    e("v_max_u32 v%d, v%d, v%d" % (T, T, H + 3))
    e("v_cmp_eq_u32 vcc, -1, v%d" % T)
    e("s_cbranch_vccz L_got2")
    if o["SLEEP2"]: e("s_sleep %d" % o["SLEEP2"])
    e("s_sub_u32 s%d, s%d, 1" % (sCNT, sCNT))
    e("s_cmp_lg_u32 s%d, 0" % sCNT)
    e("s_cbranch_scc1 L_poll2")
    lab("L_got2")
    stamp("got2")
    e("v_permlane16_swap_b32 v%d, v%d" % (H, H + 1))
    e("v_permlane16_swap_b32 v%d, v%d" % (H + 2, H + 3))
    e("v_add_f32 v%d, v%d, v%d" % (H, H, H + 1))
    e("v_add_f32 v%d, v%d, v%d" % (H + 2, H + 2, H + 3))
    e("v_permlane32_swap_b32 v%d, v%d" % (H, H + 2))
    for r in (8, 4, 2, 1):
        e("v_add_f32_dpp v%d, v%d, v%d row_ror:%d %s" % (H, H, H, r, D))
        e("v_add_f32_dpp v%d, v%d, v%d row_ror:%d %s" % (H + 2, H + 2, H + 2, r, D))
    e("v_cvt_pk_bf16_f32 v%d, 0, v%d" % (H, H))
    e("v_cvt_pk_bf16_f32 v%d, 0, v%d" % (H + 2, H + 2))
    e("v_mul_f32 v%d, v%d, v%d" % (H, vGs, H))
    e("v_mul_f32 v%d, v%d, v%d" % (H + 2, P + 1, H + 2))
    e("v_cvt_pk_bf16_f32 v%d, 0, v%d" % (H, H))
    e("v_cvt_pk_bf16_f32 v%d, 0, v%d" % (H + 2, H + 2))
    e("v_add_f32 v%d, v%d, v%d" % (H, H, H + 2))
    e("v_cvt_pk_bf16_f32 v%d, v%d, v%d" % (H, H, H))
    e("buffer_store_short v%d, v%d, s[%d:%d], 0 offen" % (H, P + 2, SOUT, SOUT + 3))
    lab("L_fin")
    if o["STAMP"]:
        stamp("end")
        e("s_lshl_b32 s%d, s2, 3" % sT0)
        e("s_add_u32 s%d, s%d, s%d" % (sT0, sT0, sW))
        e("s_lshl_b32 s%d, s%d, 6" % (sT0, sT0))
        e("s_add_u32 s%d, s%d, %d" % (sT0, sT0, DBGO + 524288))
        e("s_mov_b64 exec, 1")
        for k in range(len(stamps)):
            e("v_mov_b32 v%d, s%d" % (T, sST + k))
            e("buffer_store_dword v%d, off, s[%d:%d], s%d offset:%d" % (T, SWS, SWS + 3, sT0, 4 * k))
            e("s_waitcnt vmcnt(0)")
    lab("L_exit")
    e("s_endpgm")

    body, nn = hazard_pass(L)
    head = open(os.path.join(os.path.dirname(os.path.abspath(__file__)), "header.txt")).read()
    txt = head.replace("@LAUNCH@", "; @launch grid=(256,1,1) block=(512,1,1) lds=%d" % LDS)
    txt += ".amdgcn_target \"amdgcn-amd-amdhsa--gfx950\"\n.text\n.globl %s\n.p2align 8\n.type %s,@function\n%s:\n" % (KNAME, KNAME, KNAME)
    txt += "\n".join(body) + "\n"
    txt += """.section .rodata,"a"
.p2align 6
.amdhsa_kernel %s
  .amdhsa_next_free_vgpr %d
  .amdhsa_next_free_sgpr 102
  .amdhsa_accum_offset %d
  .amdhsa_group_segment_fixed_size 0
  .amdhsa_kernarg_size 112
  .amdhsa_user_sgpr_count 2
  .amdhsa_user_sgpr_kernarg_segment_ptr 1
  .amdhsa_system_sgpr_workgroup_id_x 1
.end_amdhsa_kernel
""" % (KNAME, 256, 256)
    return txt, dict(nv=nv, nops=nn, stamps=stamps, ninstr=len(body))

if __name__ == "__main__":
    out = sys.argv[1]
    kw = {}
    for a in sys.argv[2:]:
        k, x = a.split("=")
        kw[k] = x if k == "KPOS" else int(x, 0)
    txt, info = generate(**kw)
    open(out, "w").write(txt)
    print(out, info)
```

```python
import sys, os
sys.path.insert(0, os.path.dirname(os.path.abspath(__file__)))
from asmlib import *

KNAME = "gated_mix__sliding_block_cached__gqa_block_cached__decode_kernel"
DEF = dict(F=3, NS=24, XF=18, XA=30, PD=49, NT=1, STAMP=0, LIMIT=1 << 15, SLEEP1=0, SLEEP2=0, KR=2, VR=2, F0=0, PRIO=0)

def generate(**kw):
    o = dict(DEF); o.update(kw)
    F, NS, XF = o["F"], o["NS"], o["XF"]
    F0 = o["F0"] or F
    L = []
    def e(t): L.append("    " + t)
    def lab(t): L.append(t + ":")
    def c(t): L.append("    ; " + t)
    vm = VM(e)
    nt = " nt" if o["NT"] else ""

    pAX, pAK, pAV, pAWQ, pAWO, pBX, pBK, pBV = 4, 6, 8, 10, 12, 14, 16, 18
    pBWQ, pBWO, pGW, pOUT, pDBG, pWS = 20, 22, 24, 26, 28, 30
    SWQ, SKB, SKA, SVB, SVA, SWO, SWS, SDBG, SX, SGW, SOUT = 32, 36, 40, 44, 48, 52, 56, 60, 64, 68, 72
    sW, sH, sJ, sCQ = 76, 77, 78, 79
    sT0, sT1, sT2, sT3 = 80, 81, 82, 83
    sOff, sCNT = 84, 85
    sP0st, sP1own, sP2st, sP1ld, sP2ld, sQld, sFl = 86, 87, 88, 89, 90, 91, 92
    sTS = 94
    sST = 4
    stamps = []
    def stamp(name):
        if not o["STAMP"]: return
        k = len(stamps); assert k < 27
        stamps.append(name)
        e("s_memrealtime s[%d:%d]" % (sTS, sTS + 1))
        e("s_waitcnt lgkmcnt(0)")
        e("s_mov_b32 s%d, s%d" % (sST + k, sTS))

    nxt = [1]
    def al(n=1, align=1):
        while nxt[0] % align: nxt[0] += 1
        r = nxt[0]; nxt[0] += n; return r
    vLane, vG, vC = al(), al(), al()
    vWA, vWB = al(), al()
    vKA, vKB = al(), al()
    vColA, vColB = al(), al()
    vSum, vSum2 = al(), al()
    vL16 = al()
    vP0st, vP1st, vP2st = al(), al(), al()
    vO1, vO2, vO3 = al(), al(), al()
    vOutA, vGate, vGate1, vOffq = al(), al(), al(), al()
    vMB = al(2, 2); vMA = vMB + 1
    X = al(2, 2)
    acc = al(12, 2)
    QB = al(6, 2); QA = al(6, 2)
    S = al(5); PL = al(5)
    P = al(4, 2); R = al(2, 2)
    T = al(8, 2)
    Z = al(16, 2)
    SL = al(6 * NS, 2)
    nv = nxt[0]; assert nv <= 256, nv
    def slot(i): return SL + 6 * i

    PARTQ, PARTVA, PARTVB = 0, 6400, 12800
    QBUF, WMAX, PART3 = 19200, 19968, 20096
    LDS = PART3 + 5120 + 512
    P0, P1, P2, STB = 0, 0x40000, 0xC0000, 0x180000
    OOB = 0x40000000
    LOG2E = 0x3fb8aa3b
    SCALE = 0x3d93cd3a
    D = "row_mask:0xf bank_mask:0xf"

    iWQ, iKB, iKA, iVA, iVB, iWO, NG = 0, 5, 21, 25, 29, 45, 51
    def gslot(t):
        if t < iWO: return slot(t % NS)
        return slot(WOS[t - iWO])
    WOS = [(iKA + 0) % NS, (iKA + 1) % NS, (iKA + 2) % NS, (iKA + 3) % NS, (iVA + 0) % NS, (iVA + 1) % NS]
    consumed = {}
    slot_owner = {}
    offstate = {"v": None}
    def soff(val):
        if val == 0: return "0"
        if offstate["v"] != val:
            e("s_mov_b32 s%d, %d" % (sOff, val)); offstate["v"] = val
        return "s%d" % sOff
    def issue(t):
        sl = gslot(t)
        prev = slot_owner.get(sl)
        assert prev is None or prev in consumed, ("slot busy", t, prev)
        slot_owner[sl] = t
        if t < iKB:
            so = soff(t * 49152)
            e("buffer_load_dwordx4 v[%d:%d], v%d, s[%d:%d], %s offen%s" % (sl, sl + 3, vWA, SWQ, SWQ + 3, so, nt)); vm.issue("g%d" % t)
            e("buffer_load_dwordx2 v[%d:%d], v%d, s[%d:%d], %s offen%s" % (sl + 4, sl + 5, vWB, SWQ, SWQ + 3, so, nt)); vm.issue("g%d" % t)
        elif t < iWO:
            if t < iKA: srd, k = SKB, t - iKB
            elif t < iVA: srd, k = SKA, t - iKA
            elif t < iVB: srd, k = SVA, t - iVA
            else: srd, k = SVB, t - iVB
            so = soff((k // 3) * 4608); imm = (k % 3) * 1536
            e("buffer_load_dwordx4 v[%d:%d], v%d, s[%d:%d], %s offen offset:%d%s" % (sl, sl + 3, vKA, srd, srd + 3, so, imm, nt)); vm.issue("g%d" % t)
            e("buffer_load_dwordx2 v[%d:%d], v%d, s[%d:%d], %s offen offset:%d%s" % (sl + 4, sl + 5, vKB, srd, srd + 3, so, imm, nt)); vm.issue("g%d" % t)
        else:
            k = t - iWO
            so = soff(k * 5120)
            e("buffer_load_dwordx4 v[%d:%d], v%d, s[%d:%d], %s offen%s" % (sl, sl + 3, vWA, SWO, SWO + 3, so, nt)); vm.issue("g%d" % t)
            e("buffer_load_dword v%d, v%d, s[%d:%d], %s offen%s" % (sl + 4, vWB, SWO, SWO + 3, so, nt)); vm.issue("g%d" % t)
    landed = [-1]
    def land(t):
        if t > landed[0]:
            vm.wait("g%d" % t); landed[0] = t
    issued = [0]
    def pump(t):
        assert issued[0] == t
        if t - F >= 0 and t >= F0: land(t - F)
        issue(t); issued[0] = t + 1

    def srd(d, size):
        e("s_mov_b32 s%d, 0x%x" % (d + 2, size)); e("s_mov_b32 s%d, 0x20000" % (d + 3))
    def srd_off(d, base, soffr, size):
        e("s_add_u32 s%d, s%d, s%d" % (d, base, soffr))
        e("s_addc_u32 s%d, s%d, 0" % (d + 1, base + 1))
        srd(d, size)
    def srd_cp(d, base, size):
        e("s_mov_b32 s%d, s%d" % (d, base)); e("s_mov_b32 s%d, s%d" % (d + 1, base + 1)); srd(d, size)

    e("s_cmp_ge_u32 s2, 256")
    e("s_cbranch_scc1 L_exit")
    e("s_load_dwordx16 s[4:19], s[0:1], 0")
    e("s_load_dwordx8 s[20:27], s[0:1], 64")
    e("s_load_dwordx4 s[28:31], s[0:1], 96")
    e("v_lshrrev_b32 v%d, 6, v0" % T)
    e("v_and_b32 v%d, 63, v0" % vLane)
    e("v_readfirstlane_b32 s%d, v%d" % (sW, T))
    e("v_and_b32 v%d, 15, v0" % vC)
    e("v_lshrrev_b32 v%d, 4, v%d" % (vG, vLane))
    e("s_and_b32 s%d, s2, 7" % sT0)
    e("s_lshl_b32 s%d, s%d, 2" % (sT0, sT0))
    e("s_bfe_u32 s%d, s2, 0x20003" % sT1)
    e("s_add_u32 s%d, s%d, s%d" % (sH, sT0, sT1))
    e("s_lshr_b32 s%d, s2, 5" % sJ)
    e("s_and_b32 s%d, s%d, 3" % (sCQ, sJ))
    e("s_mul_i32 s%d, s%d, 160" % (sT0, sCQ))
    e("s_mul_i32 s%d, s%d, 20" % (sT1, sW))
    e("s_add_u32 s%d, s%d, s%d" % (sT0, sT0, sT1))
    e("v_lshl_add_u32 v%d, v%d, 2, v%d" % (T, vC, vG))
    e("v_add_u32 v%d, s%d, v%d" % (T, sT0, T))
    e("v_lshlrev_b32 v%d, 1, v%d" % (T, T))
    e("v_mul_u32_u24 v%d, 0x3000, v%d" % (T + 2, vG))
    e("v_lshl_add_u32 v%d, v%d, 4, v%d" % (vWA, vC, T + 2))
    e("v_lshl_add_u32 v%d, v%d, 3, v%d" % (vWB, vC, T + 2))
    e("v_add_u32 v%d, 0x100, v%d" % (vWB, vWB))
    e("v_mul_u32_u24 v%d, 0x180, v%d" % (T + 2, vG))
    e("v_lshl_add_u32 v%d, v%d, 4, v%d" % (vKA, vC, T + 2))
    e("v_lshl_add_u32 v%d, v%d, 3, v%d" % (vKB, vC, T + 2))
    e("v_add_u32 v%d, 0x100, v%d" % (vKB, vKB))
    e("s_mul_i32 s%d, s%d, 12288" % (sT0, sT0))
    e("s_mul_i32 s%d, s%d, 384" % (sT1, sH))
    e("s_add_u32 s%d, s%d, s%d" % (sT0, sT0, sT1))
    e("s_lshl_b32 s%d, s%d, 3" % (sT1, sJ))
    e("s_add_u32 s%d, s%d, s%d" % (sT1, sT1, sW))
    e("s_mul_i32 s%d, s%d, 0x180000" % (sT3, sH))
    e("s_mul_i32 s%d, s%d, %d" % (sT2, sT1, 64 * 384))
    e("s_add_u32 s%d, s%d, s%d" % (sT2, sT2, sT3))
    e("s_mul_i32 s%d, s%d, %d" % (sT1, sT1, 16 * 384))
    e("s_add_u32 s%d, s%d, s%d" % (sT3, sT3, sT1))
    e("s_add_u32 s%d, s%d, %d" % (sT3, sT3, 3072 * 384))
    e("s_cmp_lt_u32 s%d, 4" % sJ)
    e("s_waitcnt lgkmcnt(0)")
    e("s_cselect_b32 s%d, s%d, s%d" % (SWQ, pBWQ, pAWQ))
    e("s_cselect_b32 s%d, s%d, s%d" % (SWQ + 1, pBWQ + 1, pAWQ + 1))
    e("s_cselect_b32 s%d, s%d, s%d" % (SWO, pBWO, pAWO))
    e("s_cselect_b32 s%d, s%d, s%d" % (SWO + 1, pBWO + 1, pAWO + 1))
    srd_off(SWQ, SWQ, sT0, 19 * 12288 + 384)
    srd_cp(SX, pAX, 1280)
    e("buffer_load_ushort v%d, v%d, s[%d:%d], 0 offen" % (X, T, SX, SX + 3)); vm.issue("x")
    srd_off(SKB, pBK, sT2, 64 * 384)
    for t in range(min(F0, iKB)): pump(t)
    srd_off(SKA, pAK, sT3, 16 * 384)
    srd_off(SVB, pBV, sT2, 64 * 384)
    srd_off(SVA, pAV, sT3, 16 * 384)
    for t in range(iKB, F0): pump(t)
    srd_cp(SWS, pWS, 0x10000000)
    srd_cp(SDBG, pDBG, 256)
    srd_cp(SGW, pGW, 1280)
    srd_cp(SOUT, pOUT, 1280)
    e("s_mul_i32 s%d, s%d, 192" % (sT0, sH))
    e("s_mul_i32 s%d, s%d, 24" % (sT1, sW))
    e("s_add_u32 s%d, s%d, s%d" % (sT0, sT0, sT1))
    e("s_mul_i32 s%d, s%d, 1280" % (sT0, sT0))
    e("s_mul_i32 s%d, s%d, 320" % (sT1, sCQ))
    e("s_add_u32 s%d, s%d, s%d" % (sT0, sT0, sT1))
    srd_off(SWO, SWO, sT0, 23 * 1280 + 320)
    if o["STAMP"]:
        for k in range(27): e("s_mov_b32 s%d, 0" % (sST + k))
    stamp("start")
    e("s_lshr_b32 s%d, s%d, 2" % (sT0, sJ))
    e("s_lshl_b32 s%d, s%d, 1" % (sT1, sH))
    e("s_add_u32 s%d, s%d, s%d" % (sT2, sT1, sT0))
    e("s_mul_i32 s%d, s%d, 3072" % (sP0st, sT2))
    e("s_mul_i32 s%d, s%d, 768" % (sT3, sCQ))
    e("s_add_u32 s%d, s%d, s%d" % (sP0st, sP0st, sT3))
    e("s_lshl_b32 s%d, s%d, 3" % (sP1ld, sT2))
    e("s_add_u32 s%d, s%d, s%d" % (sP1ld, sP1ld, sW))
    e("s_lshl_b32 s%d, s%d, 10" % (sP1ld, sP1ld))
    e("s_add_u32 s%d, s%d, 0x%x" % (sP1ld, sP1ld, P1))
    e("s_lshl_b32 s%d, s%d, 9" % (sT3, sT0))
    e("s_lshl_b32 s%d, s%d, 4" % (sP2st, sH))
    e("s_sub_u32 s%d, s%d, s%d" % (sP2st, sP2st, sT3))
    e("s_mul_i32 s%d, s%d, 40960" % (sT3, sCQ))
    e("s_add_u32 s%d, s%d, s%d" % (sP2st, sP2st, sT3))
    e("s_add_u32 s%d, s%d, 0x%x" % (sP2st, sP2st, P2 + 512))
    e("s_and_b32 s%d, s%d, 1" % (sT3, sW))
    e("s_add_u32 s%d, s%d, s%d" % (sT2, sT1, sT3))
    e("s_lshl_b32 s%d, s%d, 13" % (sP1own, sT2))
    e("s_lshl_b32 s%d, s%d, 7" % (sT3, sJ))
    e("s_add_u32 s%d, s%d, s%d" % (sP1own, sP1own, sT3))
    e("s_add_u32 s%d, s%d, 0x%x" % (sP1own, sP1own, P1))
    e("s_mul_i32 s%d, s%d, 3072" % (sQld, sT2))
    e("s_lshl_b32 s%d, s%d, 3" % (sFl, sH))
    e("s_lshl_b32 s%d, s2, 10" % sP2ld)
    e("s_add_u32 s%d, s%d, 0x%x" % (sP2ld, sP2ld, P2))
    e("v_lshlrev_b32 v%d, 4, v%d" % (vL16, vLane))
    e("v_mul_u32_u24 v%d, 43, v%d" % (T, vLane))
    e("v_lshrrev_b32 v%d, 8, v%d" % (T, T))
    e("v_mul_u32_u24 v%d, 6, v%d" % (T + 1, T))
    e("v_sub_u32 v%d, v%d, v%d" % (T + 1, vLane, T + 1))
    e("v_lshlrev_b32 v%d, 4, v%d" % (T + 1, T + 1))
    e("v_lshl_add_u32 v%d, v%d, 10, v%d" % (T, T, T + 1))
    e("v_and_b32 v%d, 7, v%d" % (T + 1, vLane))
    e("v_lshlrev_b32 v%d, 10, v%d" % (T + 1, T + 1))
    e("v_lshrrev_b32 v%d, 3, v%d" % (T + 2, vLane))
    e("v_lshl_add_u32 v%d, v%d, 4, v%d" % (T + 1, T + 2, T + 1))
    e("v_cmp_gt_u32 vcc, 48, v%d" % vLane)
    e("v_cndmask_b32 v%d, v%d, v%d, vcc" % (vP1st, T + 1, T))
    e("v_mov_b32 v%d, 0x%x" % (T + 3, OOB))
    e("v_cndmask_b32 v%d, v%d, v%d, vcc" % (vP0st, T + 3, vL16))
    e("v_lshlrev_b32 v%d, 4, v%d" % (T + 2, T + 2))
    e("v_add_u32 v%d, %d, v%d" % (T + 2, 768 - 96, T + 2))
    e("v_cndmask_b32 v%d, v%d, v%d, vcc" % (vSum, T + 2, vL16))
    e("v_lshlrev_b32 v%d, 10, v%d" % (T, vLane))
    e("v_cmp_gt_u32 vcc, 40, v%d" % vLane)
    e("v_cndmask_b32 v%d, v%d, v%d, vcc" % (vP2st, T + 3, T))
    e("s_cmp_lg_u32 s%d, 7" % sW)
    e("s_cbranch_scc1 L_noclear")
    for k in range(4): e("v_mov_b32 v%d, -1" % (Z + k))
    e("s_sub_u32 s%d, s%d, 8192" % (sT0, sP1own))
    e("buffer_store_dwordx4 v[%d:%d], v%d, s[%d:%d], s%d offen sc1" % (Z, Z + 3, vP1st, SWS, SWS + 3, sT0)); vm.issue("clr", "w7")
    e("buffer_store_dwordx4 v[%d:%d], v%d, s[%d:%d], s%d offen sc1" % (Z, Z + 3, vP1st, SWS, SWS + 3, sP1own)); vm.issue("clr", "w7")
    e("buffer_store_dwordx4 v[%d:%d], v%d, s[%d:%d], s%d offen sc1" % (Z, Z + 3, vP2st, SWS, SWS + 3, sP2st)); vm.issue("clr", "w7")
    lab("L_noclear")
    for k in range(12): e("v_mov_b32 v%d, 0" % (acc + k))
    e("s_mul_i32 s%d, s%d, 800" % (sT0, sW))
    e("v_mul_u32_u24 v%d, 3, v%d" % (T, vG))
    for dst, add in ((vColA, 0), (vColB, 2)):
        if add: e("v_add_u32 v%d, %d, v%d" % (T, add, T))
        e("v_lshl_add_u32 v%d, v%d, 3, v%d" % (T + 1, vC, T))
        e("v_lshl_add_u32 v%d, v%d, 2, v%d" % (T + 2, vC, T))
        e("v_add_u32 v%d, 120, v%d" % (T + 2, T + 2))
        e("v_cmp_gt_u32 vcc, 8, v%d" % T)
        e("v_cndmask_b32 v%d, v%d, v%d, vcc" % (T + 1, T + 2, T + 1))
        e("v_lshlrev_b32 v%d, 2, v%d" % (T + 1, T + 1))
        e("v_add_u32 v%d, s%d, v%d" % (dst, sT0, T + 1))
    e("s_mov_b32 s%d, %d" % (sT0, PARTVB))
    e("s_bitcmp1_b32 s%d, 0" % sW)
    e("s_cselect_b32 s%d, %d, s%d" % (sT0, PARTVA, sT0))
    e("v_add_u32 v%d, s%d, v%d" % (vSum2, sT0, vSum))
    e("s_mul_i32 s%d, s%d, 640" % (sT0, sW))
    e("v_lshrrev_b32 v%d, 1, v%d" % (T + 3, vG))
    e("v_mul_u32_u24 v%d, 5, v%d" % (T + 3, T + 3))
    e("v_and_b32 v%d, 1, v%d" % (T + 4, vG))
    for k, dst in enumerate((vO1, vO2, vO3)):
        if k < 2: e("v_add_u32 v%d, v%d, v%d" % (T, T + 3, T + 4))
        else: e("v_mov_b32 v%d, v%d" % (T, T + 3))
        if k: e("v_add_u32 v%d, %d, v%d" % (T, 2 * k, T))
        e("v_lshl_add_u32 v%d, v%d, 3, v%d" % (T + 1, vC, T))
        e("v_lshl_add_u32 v%d, v%d, 1, v%d" % (T + 2, vC, T))
        e("v_add_u32 v%d, 120, v%d" % (T + 2, T + 2))
        e("v_cmp_gt_u32 vcc, 8, v%d" % T)
        e("v_cndmask_b32 v%d, v%d, v%d, vcc" % (T + 1, T + 2, T + 1))
        e("v_lshlrev_b32 v%d, 2, v%d" % (T + 1, T + 1))
        e("v_add_u32 v%d, s%d, v%d" % (dst, sT0, T + 1))
    e("s_lshl_b32 s%d, s2, 3" % sT0)
    e("v_lshlrev_b32 v%d, 1, v%d" % (T, vG))
    e("v_add_u32 v%d, s%d, v%d" % (T, sT0, T))
    e("v_mov_b32 v%d, 0x%x" % (T + 1, OOB))
    e("v_cmp_eq_u32 vcc, 0, v%d" % vC)
    e("v_cndmask_b32 v%d, v%d, v%d, vcc" % (vOutA, T + 1, T))
    def isred(labskip):
        e("s_cmp_lg_u32 s%d, 1" % sW)
        e("s_cbranch_scc1 %s" % labskip)
        e("s_cmp_ge_u32 s2, 160")
        e("s_cbranch_scc1 %s" % labskip)
    isred("L_nogl")
    e("v_lshlrev_b32 v%d, 2, v%d" % (T + 1, vLane))
    e("buffer_load_dwordx4 v[%d:%d], v%d, s[%d:%d], 0 offen" % (Z, Z + 3, vL16, SX, SX + 3)); vm.issue("gl", "w1")
    e("buffer_load_dword v%d, v%d, s[%d:%d], 0 offen offset:1024" % (Z + 4, T + 1, SX, SX + 3)); vm.issue("gl", "w1")
    e("buffer_load_dwordx4 v[%d:%d], v%d, s[%d:%d], 0 offen" % (Z + 6, Z + 9, vL16, SGW, SGW + 3)); vm.issue("gl", "w1")
    e("buffer_load_dword v%d, v%d, s[%d:%d], 0 offen offset:1024" % (Z + 10, T + 1, SGW, SGW + 3)); vm.issue("gl", "w1")
    lab("L_nogl")

    def dot12(sel_lo, sel_hi, sl, bc, n=6, regs=None):
        for d in range(n):
            r = regs[d] if regs else sl + d
            e("v_dot2c_f32_bf16_dpp v%d, v%d, v%d row_newbcast:%d row_mask:0xf bank_mask:0xf" % (acc + 2 * d, sel_lo, r, bc))
            e("v_dot2c_f32_bf16_dpp v%d, v%d, v%d row_newbcast:%d row_mask:0xf bank_mask:0xf" % (acc + 2 * d + 1, sel_hi, r, bc))
    def reduce12(base):
        for k in range(6): e("v_permlane32_swap_b32 v%d, v%d" % (acc + k, acc + k + 6))
        for k in range(6): e("v_add_f32 v%d, v%d, v%d" % (acc + k, acc + k, acc + k + 6))
        for k in range(3): e("v_permlane16_swap_b32 v%d, v%d" % (acc + k, acc + k + 3))
        for k in range(3): e("v_add_f32 v%d, v%d, v%d" % (acc + k, acc + k, acc + k + 3))
        e("ds_write_b32 v%d, v%d offset:%d" % (vColA, acc, base))
        e("ds_write_b32 v%d, v%d offset:%d" % (vColA, acc + 1, base + 4))
        e("ds_write_b32 v%d, v%d offset:%d" % (vColB, acc + 2, base))
    def sum8(addr, base, stride, B):
        for k in range(8):
            e("ds_read_b128 v[%d:%d], v%d offset:%d" % (B + 4 * k, B + 4 * k + 3, addr, base + k * stride))
        def pk(a, b):
            e("v_pk_add_f32 v[%d:%d], v[%d:%d], v[%d:%d]" % (a, a + 1, a, a + 1, b, b + 1))
            e("v_pk_add_f32 v[%d:%d], v[%d:%d], v[%d:%d]" % (a + 2, a + 3, a + 2, a + 3, b + 2, b + 3))
        e("s_waitcnt lgkmcnt(6)"); pk(B, B + 4)
        e("s_waitcnt lgkmcnt(4)"); pk(B + 8, B + 12)
        e("s_waitcnt lgkmcnt(2)"); pk(B + 16, B + 20); pk(B, B + 8)
        e("s_waitcnt lgkmcnt(0)"); pk(B + 24, B + 28); pk(B + 16, B + 24); pk(B, B + 16)
    def allred(r, tmp, op):
        e("%s_dpp v%d, v%d, v%d row_ror:4 %s" % (op, r, r, r, D))
        e("%s_dpp v%d, v%d, v%d row_ror:8 %s" % (op, r, r, r, D))
        e("v_mov_b32 v%d, v%d" % (tmp, r))
        e("v_permlane16_swap_b32 v%d, v%d" % (r, tmp))
        e("%s v%d, v%d, v%d" % (op, r, r, tmp))
        e("v_mov_b32 v%d, v%d" % (tmp, r))
        e("v_permlane32_swap_b32 v%d, v%d" % (r, tmp))
        e("%s v%d, v%d, v%d" % (op, r, r, tmp))
    def allred2(r0, t0, r1, t1, op):
        for rot in (4, 8):
            e("%s_dpp v%d, v%d, v%d row_ror:%d %s" % (op, r0, r0, r0, rot, D))
            e("%s_dpp v%d, v%d, v%d row_ror:%d %s" % (op, r1, r1, r1, rot, D))
        for sw in ("v_permlane16_swap_b32", "v_permlane32_swap_b32"):
            e("v_mov_b32 v%d, v%d" % (t0, r0)); e("v_mov_b32 v%d, v%d" % (t1, r1))
            e("%s v%d, v%d" % (sw, r0, t0)); e("%s v%d, v%d" % (sw, r1, t1))
            e("%s v%d, v%d, v%d" % (op, r0, r0, t0)); e("%s v%d, v%d, v%d" % (op, r1, r1, t1))
    def kquad(g0, Q, Sdst, step):
        for i in range(4):
            assert g0 + i <= landed[0], ("K not landed", g0 + i, step)
            e("v_mov_b32 v%d, 0" % (P + i))
        for d in range(6):
            for i in range(4):
                e("v_dot2c_f32_bf16 v%d, v%d, v%d" % (P + i, gslot(g0 + i) + d, Q + d))
        for i in range(4): consumed[g0 + i] = step
        e("v_add_f32_dpp v%d, v%d, v%d row_ror:8 %s" % (R, P, P, D))
        e("v_add_f32_dpp v%d, v%d, v%d row_ror:8 %s" % (R + 1, P + 2, P + 2, D))
        e("v_add_f32_dpp v%d, v%d, v%d row_ror:8 row_mask:0xf bank_mask:0xc" % (R, P + 1, P + 1))
        e("v_add_f32_dpp v%d, v%d, v%d row_ror:8 row_mask:0xf bank_mask:0xc" % (R + 1, P + 3, P + 3))
        e("v_add_f32_dpp v%d, v%d, v%d row_half_mirror %s" % (Sdst, R, R, D))
        e("v_add_f32_dpp v%d, v%d, v%d row_half_mirror row_mask:0xf bank_mask:0xa" % (Sdst, R + 1, R + 1))
        e("v_add_f32_dpp v%d, v%d, v%d quad_perm:[2,3,0,1] %s" % (Sdst, Sdst, Sdst, D))
        e("v_add_f32_dpp v%d, v%d, v%d quad_perm:[1,0,3,2] %s" % (Sdst, Sdst, Sdst, D))
        e("v_cvt_pk_bf16_f32 v%d, 0, v%d" % (Sdst, Sdst))
        e("v_mul_f32 v%d, 0x%x, v%d" % (Sdst, SCALE, Sdst))
        e("v_cvt_pk_bf16_f32 v%d, 0, v%d" % (Sdst, Sdst))
    pos = [0, 8, 4, 12]
    def fullsum(r, tmp):
        e("v_add_f32_dpp v%d, v%d, v%d row_ror:1 %s" % (r, r, r, D))
        e("v_add_f32_dpp v%d, v%d, v%d row_ror:2 %s" % (r, r, r, D))
        allred(r, tmp, "v_add_f32")
    def spin(name, loadfn, checkfn, sleep):
        e("s_mov_b32 s%d, %d" % (sCNT, o["LIMIT"]))
        lab("L_spin_" + name)
        if sleep: e("s_sleep %d" % sleep)
        loadfn()
        e("s_waitcnt vmcnt(0)")
        checkfn()
        e("s_cbranch_vccz L_ok_" + name)
        e("s_sub_u32 s%d, s%d, 1" % (sCNT, sCNT))
        e("s_cmp_lg_u32 s%d, 0" % sCNT)
        e("s_cbranch_scc1 L_spin_" + name)

    work = {}
    def at(step, fn): work.setdefault(step, []).append(fn)

    def wq_dots(i):
        def f(step):
            assert i <= landed[0]
            if i == 0: e("v_lshlrev_b32 v%d, 16, v%d" % (X + 1, X))
            dot12(X, X + 1, gslot(i), i); consumed[i] = step
        return f
    for i in range(5): at(max(i + F, F0), wq_dots(i))
    sQ1 = max(4 + F, F0)
    def q_part(step):
        reduce12(PARTQ)
        for k in range(12): e("v_mov_b32 v%d, 0" % (acc + k))
        vm.wait("clr", "w7", force=True)
        e("s_waitcnt lgkmcnt(0)")
        stamp("wqdone")
        e("s_barrier")
        e("s_cmp_lg_u32 s%d, 0" % sW)
        e("s_cbranch_scc1 L_noq0")
        B = slot((step + 3) % NS)
        assert (step + 3) % NS + 6 <= NS, "need 32 free regs"
        for k in range(6):
            prev = slot_owner.get(slot((step + 3) % NS + k)); assert prev is None or prev in consumed
        sum8(vSum, PARTQ, 800, B)
        e("buffer_store_dwordx4 v[%d:%d], v%d, s[%d:%d], s%d offen sc1" % (B, B + 3, vP0st, SWS, SWS + 3, sP0st)); vm.issue("pub0", "w0")
        lab("L_noq0")
        isred("L_nogate")
        vm.wait("gl", "w1", force=True)
        vGs = vGate
        e("v_mov_b32 v%d, 0" % vGs)
        e("s_mov_b32 s%d, 0xffff0000" % sT0)
        e("v_mov_b32 v%d, 0x3f803f80" % vGate1)
        for d in range(5):
            xr = Z + d; gr = Z + 6 + d
            e("v_lshlrev_b32 v%d, 16, v%d" % (T, xr))
            e("v_lshlrev_b32 v%d, 16, v%d" % (T + 1, gr))
            e("v_and_b32 v%d, s%d, v%d" % (T + 2, sT0, xr))
            e("v_and_b32 v%d, s%d, v%d" % (T + 3, sT0, gr))
            e("v_mul_f32 v%d, v%d, v%d" % (T, T, T + 1))
            e("v_mul_f32 v%d, v%d, v%d" % (T + 2, T + 2, T + 3))
            e("v_cvt_pk_bf16_f32 v%d, v%d, v%d" % (T, T, T + 2))
            e("v_dot2c_f32_bf16 v%d, v%d, v%d" % (vGs, T, vGate1))
        fullsum(vGs, T)
        e("v_cvt_pk_bf16_f32 v%d, 0, v%d" % (vGs, vGs))
        e("v_mul_f32 v%d, 0x%x, v%d" % (vGs, LOG2E | 0x80000000, vGs))
        e("v_exp_f32 v%d, v%d" % (vGs, vGs))
        e("v_add_f32 v%d, 1.0, v%d" % (vGs, vGs))
        e("v_rcp_f32 v%d, v%d" % (vGs, vGs))
        e("v_cvt_pk_bf16_f32 v%d, 0, v%d" % (vGs, vGs))
        e("v_sub_f32 v%d, 1.0, v%d" % (vGate1, vGs))
        e("v_cvt_pk_bf16_f32 v%d, 0, v%d" % (vGate1, vGate1))
        lab("L_nogate")
    at(sQ1, q_part)
    def raise_flag(step):
        e("s_cmp_lg_u32 s%d, 0" % sW)
        e("s_cbranch_scc1 L_noflag")
        vm.wait("pub0", "w0", force=True)
        e("s_lshl_b32 s%d, s%d, 3" % (sT0, sH))
        e("s_add_u32 s%d, s%d, s%d" % (sT0, sT0, sJ))
        e("v_mov_b32 v%d, 1" % T)
        e("s_mov_b64 exec, 1")
        e("buffer_store_byte v%d, off, s[%d:%d], s%d sc1" % (T, SDBG, SDBG + 3, sT0)); vm.issue("flag", "w0")
        e("s_mov_b64 exec, -1")
        lab("L_noflag")
        stamp("flag")
    at(sQ1 + 1 + F, raise_flag)
    def is23(labskip):
        e("s_sub_u32 s%d, s%d, 2" % (sT0, sW))
        e("s_cmp_ge_u32 s%d, 2" % sT0)
        e("s_cbranch_scc1 %s" % labskip)
    def ld_fl(): e("buffer_load_dwordx2 v[%d:%d], off, s[%d:%d], s%d sc1" % (Z, Z + 1, SDBG, SDBG + 3, sFl))
    def ck_fl():
        e("v_and_b32 v%d, v%d, v%d" % (T, Z, Z + 1))
        e("v_cmp_ne_u32 vcc, 0x01010101, v%d" % T)
    def qf1(step):
        is23("L_noqf1")
        ld_fl(); vm.issue("fl", "w23")
        lab("L_noqf1")
    at(XF, qf1)
    def qf2(step):
        is23("L_noqf2")
        vm.wait("fl", "w23", force=True)
        ck_fl()
        e("s_cbranch_vccz L_ok_fl")
        spin("fl", ld_fl, ck_fl, 4)
        lab("L_ok_fl")
        for k in range(4):
            e("buffer_load_dwordx4 v[%d:%d], v%d, s[%d:%d], s%d offen offset:%d sc1" % (Z + 4 * k, Z + 4 * k + 3, vP0st, SWS, SWS + 3, sQld, 768 * k)); vm.issue("qd", "w23")
        lab("L_noqf2")
        stamp("flok")
    at(XF + F, qf2)
    XQ = XF + 2 * F
    def qf3(step):
        is23("L_noqf3")
        vm.wait("qd", "w23", force=True)
        for a_, b_ in ((0, 4), (8, 12), (0, 8)):
            e("v_pk_add_f32 v[%d:%d], v[%d:%d], v[%d:%d]" % (Z + a_, Z + a_ + 1, Z + a_, Z + a_ + 1, Z + b_, Z + b_ + 1))
            e("v_pk_add_f32 v[%d:%d], v[%d:%d], v[%d:%d]" % (Z + a_ + 2, Z + a_ + 3, Z + a_ + 2, Z + a_ + 3, Z + b_ + 2, Z + b_ + 3))
        e("v_cvt_pk_bf16_f32 v%d, v%d, v%d" % (Z, Z, Z + 1))
        e("v_cvt_pk_bf16_f32 v%d, v%d, v%d" % (Z + 1, Z + 2, Z + 3))
        e("s_and_b32 s%d, s%d, 1" % (sT0, sW))
        e("s_mul_i32 s%d, s%d, 384" % (sT0, sT0))
        e("v_lshlrev_b32 v%d, 3, v%d" % (T, vLane))
        e("v_add_u32 v%d, s%d, v%d" % (T, sT0, T))
        e("s_mov_b32 exec_hi, 0xffff")
        e("ds_write_b64 v%d, v[%d:%d] offset:%d" % (T, Z, Z + 1, QBUF))
        e("s_mov_b32 exec_hi, -1")
        e("s_waitcnt lgkmcnt(0)")
        lab("L_noqf3")
        e("s_barrier")
        e("v_lshlrev_b32 v%d, 4, v%d" % (T, vC))
        e("v_lshlrev_b32 v%d, 3, v%d" % (T + 1, vC))
        e("ds_read_b128 v[%d:%d], v%d offset:%d" % (QB, QB + 3, T, QBUF))
        e("ds_read_b64 v[%d:%d], v%d offset:%d" % (QB + 4, QB + 5, T + 1, QBUF + 256))
        e("ds_read_b128 v[%d:%d], v%d offset:%d" % (QA, QA + 3, T, QBUF + 384))
        e("ds_read_b64 v[%d:%d], v%d offset:%d" % (QA + 4, QA + 5, T + 1, QBUF + 384 + 256))
        e("s_waitcnt lgkmcnt(0)")
        stamp("qready")
    at(XQ, qf3)
    quads = [(iKB + 4 * q, QB, S + q) for q in range(4)] + [(iKA, QA, S + 4)]
    st = XQ; n = 0
    for g0, Q, Sd in quads:
        while g0 + 3 + F > st or n >= o["KR"]:
            st += 1; n = 0
        at(st, (lambda g0=g0, Q=Q, Sd=Sd: (lambda step: kquad(g0, Q, Sd, step)))()); n += 1
    XK = st
    def softmax(step):
        e("v_max3_f32 v%d, v%d, v%d, v%d" % (T, S, S + 1, S + 2))
        e("v_max_f32 v%d, v%d, v%d" % (T, T, S + 3))
        e("v_mov_b32 v%d, v%d" % (T + 1, S + 4))
        allred2(T, T + 2, T + 1, T + 3, "v_max_f32")
        e("s_lshl_b32 s%d, s%d, 3" % (sT0, sW))
        e("v_mov_b32 v%d, s%d" % (T + 2, sT0))
        e("s_mov_b64 exec, 1")
        e("ds_write_b64 v%d, v[%d:%d] offset:%d" % (T + 2, T, T + 1, WMAX))
        e("s_mov_b64 exec, -1")
        e("v_and_b32 v%d, 7, v%d" % (T + 3, vLane))
        e("v_lshlrev_b32 v%d, 3, v%d" % (T + 3, T + 3))
        e("s_waitcnt lgkmcnt(0)")
        stamp("kdone")
        e("s_barrier")
        e("ds_read_b64 v[%d:%d], v%d offset:%d" % (vMB, vMB + 1, T + 3, WMAX))
        e("s_waitcnt lgkmcnt(0)")
        for pat in ("quad_perm:[1,0,3,2]", "quad_perm:[2,3,0,1]", "row_half_mirror"):
            e("v_max_f32_dpp v%d, v%d, v%d %s %s" % (vMB, vMB, vMB, pat, D))
            e("v_max_f32_dpp v%d, v%d, v%d %s %s" % (vMA, vMA, vMA, pat, D))
        e("s_mov_b32 s%d, 0x%x" % (sT0, LOG2E))
        for q in range(5): e("v_sub_f32 v%d, v%d, v%d" % (S + q, S + q, vMB if q < 4 else vMA))
        for q in range(5): e("v_mul_f32 v%d, s%d, v%d" % (S + q, sT0, S + q))
        for q in range(5): e("v_exp_f32 v%d, v%d" % (S + q, S + q))
        for q in range(5): e("v_cvt_pk_bf16_f32 v%d, 0, v%d" % (S + q, S + q))
        for q in range(5): e("v_lshrrev_b32 v%d, 16, v%d" % (PL + q, S + q))
        e("v_add_f32 v%d, v%d, v%d" % (T, S, S + 1))
        e("v_add_f32 v%d, v%d, v%d" % (T + 1, S + 2, S + 3))
        e("v_add_f32 v%d, v%d, v%d" % (T, T, T + 1))
        e("v_mov_b32 v%d, v%d" % (T + 1, S + 4))
        allred2(T, T + 2, T + 1, T + 3, "v_add_f32")
        e("v_cmp_gt_u32 vcc, 4, v%d" % vLane)
        e("v_mul_f32 v%d, 0x3e000000, v%d" % (T + 2, vMB))
        e("v_mul_f32 v%d, 0x3e000000, v%d" % (T + 3, vMA))
        e("v_cndmask_b32 v%d, v%d, v%d, vcc" % (T, T + 2, T))
        e("v_cndmask_b32 v%d, v%d, v%d, vcc" % (T + 1, T + 3, T + 1))
        e("s_mul_i32 s%d, s%d, 800" % (sT0, sW))
        e("v_lshlrev_b32 v%d, 2, v%d" % (T + 4, vLane))
        e("v_add_u32 v%d, s%d, v%d" % (T + 4, sT0, T + 4))
        e("s_mov_b64 exec, 0xff")
        e("ds_write_b32 v%d, v%d offset:%d" % (T + 4, T, PARTVB + 768))
        e("ds_write_b32 v%d, v%d offset:%d" % (T + 4, T + 1, PARTVA + 768))
        e("s_mov_b64 exec, -1")
        stamp("pready")
    at(XK, softmax)
    XA = o["XA"]
    def ld_all():
        e("v_lshlrev_b32 v%d, 2, v%d" % (Z + 1, vLane))
        e("buffer_load_dword v%d, v%d, s[%d:%d], 0 offen sc1" % (Z, Z + 1, SDBG, SDBG + 3))
    def ck_all(): e("v_cmp_ne_u32 vcc, 0x01010101, v%d" % Z)
    def af1(step):
        isred("L_noaf1")
        ld_all(); vm.issue("af", "w1")
        lab("L_noaf1")
    def af2(step):
        isred("L_noaf2")
        vm.wait("af", "w1", force=True)
        ck_all()
        e("s_cbranch_vccz L_ok_af")
        spin("af", ld_all, ck_all, 8)
        lab("L_ok_af")
        lab("L_noaf2")
    at(XA, af1); at(XA + F, af2)
    def vgrp(t):
        def f(step):
            assert t <= landed[0], ("V not landed", t, step)
            if t < iVB: q, i = 4, t - iVA
            else: q, i = (t - iVB) // 4, (t - iVB) % 4
            dot12(PL + q, S + q, gslot(t), pos[i]); consumed[t] = step
            if t == iVB - 1:
                reduce12(PARTVA)
                for k in range(12): e("v_mov_b32 v%d, 0" % (acc + k))
        return f
    st = XK; n = 0
    for t in range(iVA, iWO):
        while t + F > st or n >= o["VR"]:
            st += 1; n = 0
        at(st, vgrp(t)); n += 1
    XV = st
    assert XV == iWO - 1 + F, XV
    def wo_addr(step):
        e("v_mul_u32_u24 v%d, 0x500, v%d" % (T, vG))
        e("v_lshl_add_u32 v%d, v%d, 4, v%d" % (vWA, vC, T))
        e("v_lshl_add_u32 v%d, v%d, 2, v%d" % (vWB, vC, T))
        e("v_add_u32 v%d, 0x100, v%d" % (vWB, vWB))
    at(XA + 1, wo_addr)
    def v_tail(step):
        stamp("vdone")
        reduce12(PARTVB)
        for k in range(10): e("v_mov_b32 v%d, 0" % (acc + k))
        e("s_waitcnt lgkmcnt(0)")
        e("s_barrier")
        e("s_cmp_ge_u32 s%d, 2" % sW)
        e("s_cbranch_scc1 L_nopub1")
        B = slot((iVB) % NS)
        assert iVB % NS + 6 <= NS
        for k in range(6): assert slot_owner[B + 6 * k] in consumed and slot_owner[B + 6 * k] < iWO
        sum8(vSum2, 0, 800, B)
        e("buffer_store_dwordx4 v[%d:%d], v%d, s[%d:%d], s%d offen sc1" % (B, B + 3, vP1st, SWS, SWS + 3, sP1own)); vm.issue("pub1", "w01")
        lab("L_nopub1")
        stamp("pub1")
    at(XV, v_tail)

    PD = o["PD"]
    RR = Z
    def ld_p1(): e("buffer_load_dwordx4 v[%d:%d], v%d, s[%d:%d], s%d offen sc1" % (RR, RR + 3, vL16, SWS, SWS + 3, sP1ld))
    def ck_x4(r):
        e("v_max3_u32 v%d, v%d, v%d, v%d" % (T, r, r + 1, r + 2))
        e("v_max_u32 v%d, v%d, v%d" % (T, T, r + 3))
        e("v_cmp_eq_u32 vcc, -1, v%d" % T)
    nsteps = NG
    for t in range(F0, max(NG, XV + 1)):
        if t < NG: pump(t)
        else: land(t - F)
        for fn in work.get(t, []): fn(t)
        if o["STAMP"] and t in (12, 36): stamp("s%d" % t)
    if PD < NG: land(PD)
    ld_p1(); vm.issue("p1")
    stamp("polled")
    vm.wait("p1")
    ck_x4(RR)
    e("s_cbranch_vccz L_ok_p1")
    spin("p1", ld_p1, lambda: ck_x4(RR), o["SLEEP1"])
    lab("L_ok_p1")
    vm.all_done()
    stamp("got1")
    e("v_mov_b32_dpp v%d, v%d row_newbcast:7 row_mask:0xf bank_mask:0x3" % (T, RR))
    e("v_mov_b32_dpp v%d, v%d row_newbcast:15 row_mask:0xf bank_mask:0xc" % (T, RR))
    e("v_max_f32_dpp v%d, v%d, v%d row_ror:8 %s" % (T + 1, T, T, D))
    e("v_mov_b32 v%d, v%d" % (T + 2, T + 1))
    e("v_permlane16_swap_b32 v%d, v%d" % (T + 1, T + 2))
    e("v_max_f32 v%d, v%d, v%d" % (T + 1, T + 1, T + 2))
    e("v_mov_b32 v%d, v%d" % (T + 2, T + 1))
    e("v_permlane32_swap_b32 v%d, v%d" % (T + 1, T + 2))
    e("v_max_f32 v%d, v%d, v%d" % (T + 1, T + 1, T + 2))
    e("v_sub_f32 v%d, v%d, v%d" % (T, T, T + 1))
    e("v_mul_f32 v%d, 0x%x, v%d" % (T, LOG2E, T))
    e("v_exp_f32 v%d, v%d" % (T, T))
    for k in range(4): e("v_mul_f32 v%d, v%d, v%d" % (RR + k, RR + k, T))
    e("v_permlane32_swap_b32 v%d, v%d" % (RR, RR + 2))
    e("v_permlane32_swap_b32 v%d, v%d" % (RR + 1, RR + 3))
    e("v_add_f32 v%d, v%d, v%d" % (RR, RR, RR + 2))
    e("v_add_f32 v%d, v%d, v%d" % (RR + 1, RR + 1, RR + 3))
    e("v_permlane16_swap_b32 v%d, v%d" % (RR, RR + 1))
    e("v_add_f32 v%d, v%d, v%d" % (RR, RR, RR + 1))
    e("v_add_f32_dpp v%d, v%d, v%d row_ror:8 %s" % (RR, RR, RR, D))
    e("v_rcp_f32_dpp v%d, v%d row_newbcast:6 %s" % (T + 1, RR, D))
    e("v_mul_f32 v%d, v%d, v%d" % (RR, RR, T + 1))
    e("v_cvt_pk_bf16_f32 v%d, 0, v%d" % (T + 3, RR))
    e("v_lshrrev_b32 v%d, 16, v%d" % (T + 2, T + 3))
    for i in range(6):
        sl = gslot(iWO + i)
        dot12(T + 2, T + 3, sl, i, n=5)
    for k in range(5): e("v_permlane32_swap_b32 v%d, v%d" % (acc + k, acc + k + 5))
    for k in range(5): e("v_add_f32 v%d, v%d, v%d" % (acc + k, acc + k, acc + k + 5))
    e("v_mov_b32 v%d, v%d" % (acc + 5, acc + 4))
    e("v_permlane16_swap_b32 v%d, v%d" % (acc, acc + 1))
    e("v_permlane16_swap_b32 v%d, v%d" % (acc + 2, acc + 3))
    e("v_permlane16_swap_b32 v%d, v%d" % (acc + 4, acc + 5))
    for k in range(3): e("v_add_f32 v%d, v%d, v%d" % (acc + 2 * k, acc + 2 * k, acc + 2 * k + 1))
    for k, a_ in enumerate((vO1, vO2, vO3)): e("ds_write_b32 v%d, v%d offset:%d" % (a_, acc + 2 * k, PART3))
    e("s_waitcnt lgkmcnt(0)")
    e("s_barrier")
    e("s_cmp_lg_u32 s%d, 0" % sW)
    e("s_cbranch_scc1 L_nop2")
    sum8(vL16, PART3, 640, slot(iVB % NS))
    B = slot(iVB % NS)
    e("buffer_store_dwordx4 v[%d:%d], v%d, s[%d:%d], s%d offen sc1" % (B, B + 3, vP2st, SWS, SWS + 3, sP2st))
    stamp("pub2")
    e("s_branch L_fin")
    lab("L_nop2")
    isred("L_fin")
    H = Z
    def ld_p2(): e("buffer_load_dwordx4 v[%d:%d], v%d, s[%d:%d], s%d offen sc1" % (H, H + 3, vL16, SWS, SWS + 3, sP2ld))
    e("s_mov_b32 s%d, %d" % (sCNT, o["LIMIT"]))
    lab("L_poll2")
    ld_p2()
    e("s_waitcnt vmcnt(0)")
    ck_x4(H)
    e("s_cbranch_vccz L_got2")
    if o["SLEEP2"]: e("s_sleep %d" % o["SLEEP2"])
    e("s_sub_u32 s%d, s%d, 1" % (sCNT, sCNT))
    e("s_cmp_lg_u32 s%d, 0" % sCNT)
    e("s_cbranch_scc1 L_poll2")
    lab("L_got2")
    stamp("got2")
    e("v_permlane16_swap_b32 v%d, v%d" % (H, H + 1))
    e("v_permlane16_swap_b32 v%d, v%d" % (H + 2, H + 3))
    e("v_add_f32 v%d, v%d, v%d" % (H, H, H + 1))
    e("v_add_f32 v%d, v%d, v%d" % (H + 2, H + 2, H + 3))
    e("v_permlane32_swap_b32 v%d, v%d" % (H, H + 2))
    for r in (8, 4, 2, 1):
        e("v_add_f32_dpp v%d, v%d, v%d row_ror:%d %s" % (H, H, H, r, D))
        e("v_add_f32_dpp v%d, v%d, v%d row_ror:%d %s" % (H + 2, H + 2, H + 2, r, D))
    e("v_cvt_pk_bf16_f32 v%d, 0, v%d" % (H, H))
    e("v_cvt_pk_bf16_f32 v%d, 0, v%d" % (H + 2, H + 2))
    e("v_mul_f32 v%d, v%d, v%d" % (H, vGate, H))
    e("v_mul_f32 v%d, v%d, v%d" % (H + 2, vGate1, H + 2))
    e("v_cvt_pk_bf16_f32 v%d, 0, v%d" % (H, H))
    e("v_cvt_pk_bf16_f32 v%d, 0, v%d" % (H + 2, H + 2))
    e("v_add_f32 v%d, v%d, v%d" % (H, H, H + 2))
    e("v_cvt_pk_bf16_f32 v%d, v%d, v%d" % (H, H, H))
    e("buffer_store_short v%d, v%d, s[%d:%d], 0 offen" % (H, vOutA, SOUT, SOUT + 3))
    lab("L_fin")
    if o["STAMP"]:
        stamp("end")
        e("s_lshl_b32 s%d, s2, 3" % sT0)
        e("s_add_u32 s%d, s%d, s%d" % (sT0, sT0, sW))
        e("s_lshl_b32 s%d, s%d, 7" % (sT0, sT0))
        e("s_add_u32 s%d, s%d, %d" % (sT0, sT0, STB))
        e("s_mov_b64 exec, 1")
        for k in range(len(stamps)):
            e("v_mov_b32 v%d, s%d" % (T, sST + k))
            e("buffer_store_dword v%d, off, s[%d:%d], s%d offset:%d" % (T, SWS, SWS + 3, sT0, 4 * k))
            e("s_waitcnt vmcnt(0)")
    lab("L_exit")
    e("s_endpgm")

    body, nn = hazard_pass(L)
    head = open(os.path.join(os.path.dirname(os.path.abspath(__file__)), "header.txt")).read()
    txt = head.replace("@LAUNCH@", "; @launch grid=(256,1,1) block=(512,1,1) lds=%d" % LDS)
    txt += ".amdgcn_target \"amdgcn-amd-amdhsa--gfx950\"\n.text\n.globl %s\n.p2align 8\n.type %s,@function\n%s:\n" % (KNAME, KNAME, KNAME)
    txt += "\n".join(body) + "\n"
    txt += """.section .rodata,"a"
.p2align 6
.amdhsa_kernel %s
  .amdhsa_next_free_vgpr %d
  .amdhsa_next_free_sgpr 102
  .amdhsa_accum_offset %d
  .amdhsa_group_segment_fixed_size 0
  .amdhsa_kernarg_size 112
  .amdhsa_user_sgpr_count 2
  .amdhsa_user_sgpr_kernarg_segment_ptr 1
  .amdhsa_system_sgpr_workgroup_id_x 1
.end_amdhsa_kernel
""" % (KNAME, 256, 256)
    return txt, dict(nv=nv, nops=nn, stamps=",".join(stamps), ninstr=len(body), XQ=XQ, XK=XK, XV=XV)

if __name__ == "__main__":
    out = sys.argv[1]
    kw = {}
    for a in sys.argv[2:]:
        k, x = a.split("=")
        kw[k] = int(x, 0)
    txt, info = generate(**kw)
    open(out, "w").write(txt)
    print(out, info)
```

```python
import sys, os
sys.path.insert(0, os.path.dirname(os.path.abspath(__file__)))
from asmlib import *

KNAME = "gated_mix__sliding_block_cached__gqa_block_cached__decode_kernel"
DEF = dict(F=3, NS=24, XF=18, XA=30, PD=49, NT=1, STAMP=0, LIMIT=1 << 15, SLEEP1=0, SLEEP2=0, KR=2, VR=2, F0=0, PRIO=0, MAP=0)

def generate(**kw):
    o = dict(DEF); o.update(kw)
    F, NS, XF = o["F"], o["NS"], o["XF"]
    F0 = o["F0"] or F
    L = []
    def e(t): L.append("    " + t)
    def lab(t): L.append(t + ":")
    def c(t): L.append("    ; " + t)
    vm = VM(e)
    nt = " nt" if o["NT"] else ""

    pAX, pAK, pAV, pAWQ, pAWO, pBX, pBK, pBV = 4, 6, 8, 10, 12, 14, 16, 18
    pBWQ, pBWO, pGW, pOUT, pDBG, pWS = 20, 22, 24, 26, 28, 30
    SWQ, SKB, SKA, SVB, SVA, SWO, SWS, SDBG, SX, SGW, SOUT = 32, 36, 40, 44, 48, 52, 56, 60, 64, 68, 72
    sW, sH, sJ, sCQ = 76, 77, 78, 79
    sT0, sT1, sT2, sT3 = 80, 81, 82, 83
    sOff, sCNT = 84, 85
    sP0st, sP1own, sP2st, sP1ld, sP2ld, sQld, sFl = 86, 87, 88, 89, 90, 91, 92
    sTS = 94
    sST = 4
    stamps = []
    def stamp(name):
        if not o["STAMP"]: return
        k = len(stamps); assert k < 27
        stamps.append(name)
        e("s_memrealtime s[%d:%d]" % (sTS, sTS + 1))
        e("s_waitcnt lgkmcnt(0)")
        e("s_mov_b32 s%d, s%d" % (sST + k, sTS))

    nxt = [1]
    def al(n=1, align=1):
        while nxt[0] % align: nxt[0] += 1
        r = nxt[0]; nxt[0] += n; return r
    vLane, vG, vC = al(), al(), al()
    vWA, vWB = al(), al()
    vKA, vKB = al(), al()
    vColA, vColB = al(), al()
    vSum, vSum2 = al(), al()
    vL16 = al()
    vP0st, vP1st, vP2st = al(), al(), al()
    vO1, vO2, vO3 = al(), al(), al()
    vOutA, vGate, vGate1, vOffq = al(), al(), al(), al()
    vMB = al(2, 2); vMA = vMB + 1
    X = al(2, 2)
    acc = al(12, 2)
    QB = al(6, 2); QA = al(6, 2)
    S = al(5); PL = al(5)
    P = al(4, 2); R = al(2, 2)
    T = al(8, 2)
    Z = al(16, 2)
    SL = al(6 * NS, 2)
    nv = nxt[0]; assert nv <= 256, nv
    def slot(i): return SL + 6 * i

    PARTQ, PARTVA, PARTVB = 0, 6400, 12800
    QBUF, WMAX, PART3 = 19200, 19968, 20096
    LDS = PART3 + 5120 + 512
    P0, P1, P2, STB = 0, 0x40000, 0xC0000, 0x180000
    OOB = 0x40000000
    LOG2E = 0x3fb8aa3b
    SCALE = 0x3d93cd3a
    D = "row_mask:0xf bank_mask:0xf"

    iWQ, iKB, iKA, iVA, iVB, iWO, NG = 0, 5, 21, 25, 29, 45, 51
    def gslot(t):
        if t < iWO: return slot(t % NS)
        return slot(WOS[t - iWO])
    WOS = [(iKA + 0) % NS, (iKA + 1) % NS, (iKA + 2) % NS, (iKA + 3) % NS, (iVA + 0) % NS, (iVA + 1) % NS]
    consumed = {}
    slot_owner = {}
    offstate = {"v": None}
    def soff(val):
        if val == 0: return "0"
        if offstate["v"] != val:
            e("s_mov_b32 s%d, %d" % (sOff, val)); offstate["v"] = val
        return "s%d" % sOff
    def issue(t):
        sl = gslot(t)
        prev = slot_owner.get(sl)
        assert prev is None or prev in consumed, ("slot busy", t, prev)
        slot_owner[sl] = t
        if t < iKB:
            so = soff(t * 49152)
            e("buffer_load_dwordx4 v[%d:%d], v%d, s[%d:%d], %s offen%s" % (sl, sl + 3, vWA, SWQ, SWQ + 3, so, nt)); vm.issue("g%d" % t)
            e("buffer_load_dwordx2 v[%d:%d], v%d, s[%d:%d], %s offen%s" % (sl + 4, sl + 5, vWB, SWQ, SWQ + 3, so, nt)); vm.issue("g%d" % t)
        elif t < iWO:
            if t < iKA: srd, k = SKB, t - iKB
            elif t < iVA: srd, k = SKA, t - iKA
            elif t < iVB: srd, k = SVA, t - iVA
            else: srd, k = SVB, t - iVB
            so = soff((k // 3) * 4608); imm = (k % 3) * 1536
            e("buffer_load_dwordx4 v[%d:%d], v%d, s[%d:%d], %s offen offset:%d%s" % (sl, sl + 3, vKA, srd, srd + 3, so, imm, nt)); vm.issue("g%d" % t)
            e("buffer_load_dwordx2 v[%d:%d], v%d, s[%d:%d], %s offen offset:%d%s" % (sl + 4, sl + 5, vKB, srd, srd + 3, so, imm, nt)); vm.issue("g%d" % t)
        else:
            k = t - iWO
            so = soff(k * 5120)
            e("buffer_load_dwordx4 v[%d:%d], v%d, s[%d:%d], %s offen%s" % (sl, sl + 3, vWA, SWO, SWO + 3, so, nt)); vm.issue("g%d" % t)
            e("buffer_load_dword v%d, v%d, s[%d:%d], %s offen%s" % (sl + 4, vWB, SWO, SWO + 3, so, nt)); vm.issue("g%d" % t)
    landed = [-1]
    def land(t):
        if t > landed[0]:
            vm.wait("g%d" % t); landed[0] = t
    issued = [0]
    def pump(t):
        assert issued[0] == t
        if t - F >= 0 and t >= F0: land(t - F)
        issue(t); issued[0] = t + 1

    def srd(d, size):
        e("s_mov_b32 s%d, 0x%x" % (d + 2, size)); e("s_mov_b32 s%d, 0x20000" % (d + 3))
    def srd_off(d, base, soffr, size):
        e("s_add_u32 s%d, s%d, s%d" % (d, base, soffr))
        e("s_addc_u32 s%d, s%d, 0" % (d + 1, base + 1))
        srd(d, size)
    def srd_cp(d, base, size):
        e("s_mov_b32 s%d, s%d" % (d, base)); e("s_mov_b32 s%d, s%d" % (d + 1, base + 1)); srd(d, size)

    e("s_cmp_ge_u32 s2, 256")
    e("s_cbranch_scc1 L_exit")
    e("s_load_dwordx16 s[4:19], s[0:1], 0")
    e("s_load_dwordx8 s[20:27], s[0:1], 64")
    e("s_load_dwordx4 s[28:31], s[0:1], 96")
    e("v_lshrrev_b32 v%d, 6, v0" % T)
    e("v_and_b32 v%d, 63, v0" % vLane)
    e("v_readfirstlane_b32 s%d, v%d" % (sW, T))
    e("v_and_b32 v%d, 15, v0" % vC)
    e("v_lshrrev_b32 v%d, 4, v%d" % (vG, vLane))
    if o["MAP"] == 0:
        e("s_and_b32 s%d, s2, 7" % sT0)
        e("s_lshl_b32 s%d, s%d, 2" % (sT0, sT0))
        e("s_bfe_u32 s%d, s2, 0x20003" % sT1)
        e("s_add_u32 s%d, s%d, s%d" % (sH, sT0, sT1))
        e("s_lshr_b32 s%d, s2, 5" % sJ)
    elif o["MAP"] == 1:
        e("s_lshr_b32 s%d, s2, 3" % sH)
        e("s_and_b32 s%d, s2, 7" % sJ)
    elif o["MAP"] == 2:
        e("s_lshr_b32 s%d, s2, 3" % sH)
        e("s_add_u32 s%d, s2, s%d" % (sJ, sH))
        e("s_and_b32 s%d, s%d, 7" % (sJ, sJ))
    e("s_and_b32 s%d, s%d, 3" % (sCQ, sJ))
    e("s_mul_i32 s%d, s%d, 160" % (sT0, sCQ))
    e("s_mul_i32 s%d, s%d, 20" % (sT1, sW))
    e("s_add_u32 s%d, s%d, s%d" % (sT0, sT0, sT1))
    e("v_lshl_add_u32 v%d, v%d, 2, v%d" % (T, vC, vG))
    e("v_add_u32 v%d, s%d, v%d" % (T, sT0, T))
    e("v_lshlrev_b32 v%d, 1, v%d" % (T, T))
    e("v_mul_u32_u24 v%d, 0x3000, v%d" % (T + 2, vG))
    e("v_lshl_add_u32 v%d, v%d, 4, v%d" % (vWA, vC, T + 2))
    e("v_lshl_add_u32 v%d, v%d, 3, v%d" % (vWB, vC, T + 2))
    e("v_add_u32 v%d, 0x100, v%d" % (vWB, vWB))
    e("v_mul_u32_u24 v%d, 0x180, v%d" % (T + 2, vG))
    e("v_lshl_add_u32 v%d, v%d, 4, v%d" % (vKA, vC, T + 2))
    e("v_lshl_add_u32 v%d, v%d, 3, v%d" % (vKB, vC, T + 2))
    e("v_add_u32 v%d, 0x100, v%d" % (vKB, vKB))
    e("s_mul_i32 s%d, s%d, 12288" % (sT0, sT0))
    e("s_mul_i32 s%d, s%d, 384" % (sT1, sH))
    e("s_add_u32 s%d, s%d, s%d" % (sT0, sT0, sT1))
    e("s_lshl_b32 s%d, s%d, 3" % (sT1, sJ))
    e("s_add_u32 s%d, s%d, s%d" % (sT1, sT1, sW))
    e("s_mul_i32 s%d, s%d, 0x180000" % (sT3, sH))
    e("s_mul_i32 s%d, s%d, %d" % (sT2, sT1, 64 * 384))
    e("s_add_u32 s%d, s%d, s%d" % (sT2, sT2, sT3))
    e("s_mul_i32 s%d, s%d, %d" % (sT1, sT1, 16 * 384))
    e("s_add_u32 s%d, s%d, s%d" % (sT3, sT3, sT1))
    e("s_add_u32 s%d, s%d, %d" % (sT3, sT3, 3072 * 384))
    e("s_cmp_lt_u32 s%d, 4" % sJ)
    e("s_waitcnt lgkmcnt(0)")
    e("s_cselect_b32 s%d, s%d, s%d" % (SWQ, pBWQ, pAWQ))
    e("s_cselect_b32 s%d, s%d, s%d" % (SWQ + 1, pBWQ + 1, pAWQ + 1))
    e("s_cselect_b32 s%d, s%d, s%d" % (SWO, pBWO, pAWO))
    e("s_cselect_b32 s%d, s%d, s%d" % (SWO + 1, pBWO + 1, pAWO + 1))
    srd_off(SWQ, SWQ, sT0, 19 * 12288 + 384)
    srd_cp(SX, pAX, 1280)
    e("buffer_load_ushort v%d, v%d, s[%d:%d], 0 offen" % (X, T, SX, SX + 3)); vm.issue("x")
    srd_off(SKB, pBK, sT2, 64 * 384)
    for t in range(min(F0, iKB)): pump(t)
    srd_off(SKA, pAK, sT3, 16 * 384)
    srd_off(SVB, pBV, sT2, 64 * 384)
    srd_off(SVA, pAV, sT3, 16 * 384)
    for t in range(iKB, F0): pump(t)
    srd_cp(SWS, pWS, 0x10000000)
    srd_cp(SDBG, pDBG, 256)
    srd_cp(SGW, pGW, 1280)
    srd_cp(SOUT, pOUT, 1280)
    e("s_mul_i32 s%d, s%d, 192" % (sT0, sH))
    e("s_mul_i32 s%d, s%d, 24" % (sT1, sW))
    e("s_add_u32 s%d, s%d, s%d" % (sT0, sT0, sT1))
    e("s_mul_i32 s%d, s%d, 1280" % (sT0, sT0))
    e("s_mul_i32 s%d, s%d, 320" % (sT1, sCQ))
    e("s_add_u32 s%d, s%d, s%d" % (sT0, sT0, sT1))
    srd_off(SWO, SWO, sT0, 23 * 1280 + 320)
    if o["STAMP"]:
        for k in range(27): e("s_mov_b32 s%d, 0" % (sST + k))
    stamp("start")
    e("s_lshr_b32 s%d, s%d, 2" % (sT0, sJ))
    e("s_lshl_b32 s%d, s%d, 1" % (sT1, sH))
    e("s_add_u32 s%d, s%d, s%d" % (sT2, sT1, sT0))
    e("s_mul_i32 s%d, s%d, 3072" % (sP0st, sT2))
    e("s_mul_i32 s%d, s%d, 768" % (sT3, sCQ))
    e("s_add_u32 s%d, s%d, s%d" % (sP0st, sP0st, sT3))
    e("s_lshl_b32 s%d, s%d, 3" % (sP1ld, sT2))
    e("s_add_u32 s%d, s%d, s%d" % (sP1ld, sP1ld, sW))
    e("s_lshl_b32 s%d, s%d, 10" % (sP1ld, sP1ld))
    e("s_add_u32 s%d, s%d, 0x%x" % (sP1ld, sP1ld, P1))
    e("s_lshl_b32 s%d, s%d, 9" % (sT3, sT0))
    e("s_lshl_b32 s%d, s%d, 4" % (sP2st, sH))
    e("s_sub_u32 s%d, s%d, s%d" % (sP2st, sP2st, sT3))
    e("s_mul_i32 s%d, s%d, 40960" % (sT3, sCQ))
    e("s_add_u32 s%d, s%d, s%d" % (sP2st, sP2st, sT3))
    e("s_add_u32 s%d, s%d, 0x%x" % (sP2st, sP2st, P2 + 512))
    e("s_and_b32 s%d, s%d, 1" % (sT3, sW))
    e("s_add_u32 s%d, s%d, s%d" % (sT2, sT1, sT3))
    e("s_lshl_b32 s%d, s%d, 13" % (sP1own, sT2))
    e("s_lshl_b32 s%d, s%d, 7" % (sT3, sJ))
    e("s_add_u32 s%d, s%d, s%d" % (sP1own, sP1own, sT3))
    e("s_add_u32 s%d, s%d, 0x%x" % (sP1own, sP1own, P1))
    e("s_mul_i32 s%d, s%d, 3072" % (sQld, sT2))
    e("s_lshl_b32 s%d, s%d, 3" % (sFl, sH))
    e("s_lshl_b32 s%d, s2, 10" % sP2ld)
    e("s_add_u32 s%d, s%d, 0x%x" % (sP2ld, sP2ld, P2))
    e("v_lshlrev_b32 v%d, 4, v%d" % (vL16, vLane))
    e("v_mul_u32_u24 v%d, 43, v%d" % (T, vLane))
    e("v_lshrrev_b32 v%d, 8, v%d" % (T, T))
    e("v_mul_u32_u24 v%d, 6, v%d" % (T + 1, T))
    e("v_sub_u32 v%d, v%d, v%d" % (T + 1, vLane, T + 1))
    e("v_lshlrev_b32 v%d, 4, v%d" % (T + 1, T + 1))
    e("v_lshl_add_u32 v%d, v%d, 10, v%d" % (T, T, T + 1))
    e("v_and_b32 v%d, 7, v%d" % (T + 1, vLane))
    e("v_lshlrev_b32 v%d, 10, v%d" % (T + 1, T + 1))
    e("v_lshrrev_b32 v%d, 3, v%d" % (T + 2, vLane))
    e("v_lshl_add_u32 v%d, v%d, 4, v%d" % (T + 1, T + 2, T + 1))
    e("v_cmp_gt_u32 vcc, 48, v%d" % vLane)
    e("v_cndmask_b32 v%d, v%d, v%d, vcc" % (vP1st, T + 1, T))
    e("v_mov_b32 v%d, 0x%x" % (T + 3, OOB))
    e("v_cndmask_b32 v%d, v%d, v%d, vcc" % (vP0st, T + 3, vL16))
    e("v_lshlrev_b32 v%d, 4, v%d" % (T + 2, T + 2))
    e("v_add_u32 v%d, %d, v%d" % (T + 2, 768 - 96, T + 2))
    e("v_cndmask_b32 v%d, v%d, v%d, vcc" % (vSum, T + 2, vL16))
    e("v_lshlrev_b32 v%d, 10, v%d" % (T, vLane))
    e("v_cmp_gt_u32 vcc, 40, v%d" % vLane)
    e("v_cndmask_b32 v%d, v%d, v%d, vcc" % (vP2st, T + 3, T))
    e("s_cmp_lg_u32 s%d, 7" % sW)
    e("s_cbranch_scc1 L_noclear")
    for k in range(4): e("v_mov_b32 v%d, -1" % (Z + k))
    e("s_sub_u32 s%d, s%d, 8192" % (sT0, sP1own))
    e("buffer_store_dwordx4 v[%d:%d], v%d, s[%d:%d], s%d offen sc1" % (Z, Z + 3, vP1st, SWS, SWS + 3, sT0)); vm.issue("clr", "w7")
    e("buffer_store_dwordx4 v[%d:%d], v%d, s[%d:%d], s%d offen sc1" % (Z, Z + 3, vP1st, SWS, SWS + 3, sP1own)); vm.issue("clr", "w7")
    e("buffer_store_dwordx4 v[%d:%d], v%d, s[%d:%d], s%d offen sc1" % (Z, Z + 3, vP2st, SWS, SWS + 3, sP2st)); vm.issue("clr", "w7")
    lab("L_noclear")
    for k in range(12): e("v_mov_b32 v%d, 0" % (acc + k))
    e("s_mul_i32 s%d, s%d, 800" % (sT0, sW))
    e("v_mul_u32_u24 v%d, 3, v%d" % (T, vG))
    for dst, add in ((vColA, 0), (vColB, 2)):
        if add: e("v_add_u32 v%d, %d, v%d" % (T, add, T))
        e("v_lshl_add_u32 v%d, v%d, 3, v%d" % (T + 1, vC, T))
        e("v_lshl_add_u32 v%d, v%d, 2, v%d" % (T + 2, vC, T))
        e("v_add_u32 v%d, 120, v%d" % (T + 2, T + 2))
        e("v_cmp_gt_u32 vcc, 8, v%d" % T)
        e("v_cndmask_b32 v%d, v%d, v%d, vcc" % (T + 1, T + 2, T + 1))
        e("v_lshlrev_b32 v%d, 2, v%d" % (T + 1, T + 1))
        e("v_add_u32 v%d, s%d, v%d" % (dst, sT0, T + 1))
    e("s_mov_b32 s%d, %d" % (sT0, PARTVB))
    e("s_bitcmp1_b32 s%d, 0" % sW)
    e("s_cselect_b32 s%d, %d, s%d" % (sT0, PARTVA, sT0))
    e("v_add_u32 v%d, s%d, v%d" % (vSum2, sT0, vSum))
    e("s_mul_i32 s%d, s%d, 640" % (sT0, sW))
    e("v_lshrrev_b32 v%d, 1, v%d" % (T + 3, vG))
    e("v_mul_u32_u24 v%d, 5, v%d" % (T + 3, T + 3))
    e("v_and_b32 v%d, 1, v%d" % (T + 4, vG))
    for k, dst in enumerate((vO1, vO2, vO3)):
        if k < 2: e("v_add_u32 v%d, v%d, v%d" % (T, T + 3, T + 4))
        else: e("v_mov_b32 v%d, v%d" % (T, T + 3))
        if k: e("v_add_u32 v%d, %d, v%d" % (T, 2 * k, T))
        e("v_lshl_add_u32 v%d, v%d, 3, v%d" % (T + 1, vC, T))
        e("v_lshl_add_u32 v%d, v%d, 1, v%d" % (T + 2, vC, T))
        e("v_add_u32 v%d, 120, v%d" % (T + 2, T + 2))
        e("v_cmp_gt_u32 vcc, 8, v%d" % T)
        e("v_cndmask_b32 v%d, v%d, v%d, vcc" % (T + 1, T + 2, T + 1))
        e("v_lshlrev_b32 v%d, 2, v%d" % (T + 1, T + 1))
        e("v_add_u32 v%d, s%d, v%d" % (dst, sT0, T + 1))
    e("s_lshl_b32 s%d, s2, 3" % sT0)
    e("v_lshlrev_b32 v%d, 1, v%d" % (T, vG))
    e("v_add_u32 v%d, s%d, v%d" % (T, sT0, T))
    e("v_mov_b32 v%d, 0x%x" % (T + 1, OOB))
    e("v_cmp_eq_u32 vcc, 0, v%d" % vC)
    e("v_cndmask_b32 v%d, v%d, v%d, vcc" % (vOutA, T + 1, T))
    def isred(labskip):
        e("s_cmp_lg_u32 s%d, 1" % sW)
        e("s_cbranch_scc1 %s" % labskip)
        e("s_cmp_ge_u32 s2, 160")
        e("s_cbranch_scc1 %s" % labskip)
    isred("L_nogl")
    e("v_lshlrev_b32 v%d, 2, v%d" % (T + 1, vLane))
    e("buffer_load_dwordx4 v[%d:%d], v%d, s[%d:%d], 0 offen" % (Z, Z + 3, vL16, SX, SX + 3)); vm.issue("gl", "w1")
    e("buffer_load_dword v%d, v%d, s[%d:%d], 0 offen offset:1024" % (Z + 4, T + 1, SX, SX + 3)); vm.issue("gl", "w1")
    e("buffer_load_dwordx4 v[%d:%d], v%d, s[%d:%d], 0 offen" % (Z + 6, Z + 9, vL16, SGW, SGW + 3)); vm.issue("gl", "w1")
    e("buffer_load_dword v%d, v%d, s[%d:%d], 0 offen offset:1024" % (Z + 10, T + 1, SGW, SGW + 3)); vm.issue("gl", "w1")
    lab("L_nogl")

    def dot12(sel_lo, sel_hi, sl, bc, n=6, regs=None):
        for d in range(n):
            r = regs[d] if regs else sl + d
            e("v_dot2c_f32_bf16_dpp v%d, v%d, v%d row_newbcast:%d row_mask:0xf bank_mask:0xf" % (acc + 2 * d, sel_lo, r, bc))
            e("v_dot2c_f32_bf16_dpp v%d, v%d, v%d row_newbcast:%d row_mask:0xf bank_mask:0xf" % (acc + 2 * d + 1, sel_hi, r, bc))
    def reduce12(base):
        for k in range(6): e("v_permlane32_swap_b32 v%d, v%d" % (acc + k, acc + k + 6))
        for k in range(6): e("v_add_f32 v%d, v%d, v%d" % (acc + k, acc + k, acc + k + 6))
        for k in range(3): e("v_permlane16_swap_b32 v%d, v%d" % (acc + k, acc + k + 3))
        for k in range(3): e("v_add_f32 v%d, v%d, v%d" % (acc + k, acc + k, acc + k + 3))
        e("ds_write_b32 v%d, v%d offset:%d" % (vColA, acc, base))
        e("ds_write_b32 v%d, v%d offset:%d" % (vColA, acc + 1, base + 4))
        e("ds_write_b32 v%d, v%d offset:%d" % (vColB, acc + 2, base))
    def sum8(addr, base, stride, B):
        for k in range(8):
            e("ds_read_b128 v[%d:%d], v%d offset:%d" % (B + 4 * k, B + 4 * k + 3, addr, base + k * stride))
        def pk(a, b):
            e("v_pk_add_f32 v[%d:%d], v[%d:%d], v[%d:%d]" % (a, a + 1, a, a + 1, b, b + 1))
            e("v_pk_add_f32 v[%d:%d], v[%d:%d], v[%d:%d]" % (a + 2, a + 3, a + 2, a + 3, b + 2, b + 3))
        e("s_waitcnt lgkmcnt(6)"); pk(B, B + 4)
        e("s_waitcnt lgkmcnt(4)"); pk(B + 8, B + 12)
        e("s_waitcnt lgkmcnt(2)"); pk(B + 16, B + 20); pk(B, B + 8)
        e("s_waitcnt lgkmcnt(0)"); pk(B + 24, B + 28); pk(B + 16, B + 24); pk(B, B + 16)
    def allred(r, tmp, op):
        e("%s_dpp v%d, v%d, v%d row_ror:4 %s" % (op, r, r, r, D))
        e("%s_dpp v%d, v%d, v%d row_ror:8 %s" % (op, r, r, r, D))
        e("v_mov_b32 v%d, v%d" % (tmp, r))
        e("v_permlane16_swap_b32 v%d, v%d" % (r, tmp))
        e("%s v%d, v%d, v%d" % (op, r, r, tmp))
        e("v_mov_b32 v%d, v%d" % (tmp, r))
        e("v_permlane32_swap_b32 v%d, v%d" % (r, tmp))
        e("%s v%d, v%d, v%d" % (op, r, r, tmp))
    def allred2(r0, t0, r1, t1, op):
        for rot in (4, 8):
            e("%s_dpp v%d, v%d, v%d row_ror:%d %s" % (op, r0, r0, r0, rot, D))
            e("%s_dpp v%d, v%d, v%d row_ror:%d %s" % (op, r1, r1, r1, rot, D))
        for sw in ("v_permlane16_swap_b32", "v_permlane32_swap_b32"):
            e("v_mov_b32 v%d, v%d" % (t0, r0)); e("v_mov_b32 v%d, v%d" % (t1, r1))
            e("%s v%d, v%d" % (sw, r0, t0)); e("%s v%d, v%d" % (sw, r1, t1))
            e("%s v%d, v%d, v%d" % (op, r0, r0, t0)); e("%s v%d, v%d, v%d" % (op, r1, r1, t1))
    def kquad(g0, Q, Sdst, step):
        for i in range(4):
            assert g0 + i <= landed[0], ("K not landed", g0 + i, step)
            e("v_mov_b32 v%d, 0" % (P + i))
        for d in range(6):
            for i in range(4):
                e("v_dot2c_f32_bf16 v%d, v%d, v%d" % (P + i, gslot(g0 + i) + d, Q + d))
        for i in range(4): consumed[g0 + i] = step
        e("v_add_f32_dpp v%d, v%d, v%d row_ror:8 %s" % (R, P, P, D))
        e("v_add_f32_dpp v%d, v%d, v%d row_ror:8 %s" % (R + 1, P + 2, P + 2, D))
        e("v_add_f32_dpp v%d, v%d, v%d row_ror:8 row_mask:0xf bank_mask:0xc" % (R, P + 1, P + 1))
        e("v_add_f32_dpp v%d, v%d, v%d row_ror:8 row_mask:0xf bank_mask:0xc" % (R + 1, P + 3, P + 3))
        e("v_add_f32_dpp v%d, v%d, v%d row_half_mirror %s" % (Sdst, R, R, D))
        e("v_add_f32_dpp v%d, v%d, v%d row_half_mirror row_mask:0xf bank_mask:0xa" % (Sdst, R + 1, R + 1))
        e("v_add_f32_dpp v%d, v%d, v%d quad_perm:[2,3,0,1] %s" % (Sdst, Sdst, Sdst, D))
        e("v_add_f32_dpp v%d, v%d, v%d quad_perm:[1,0,3,2] %s" % (Sdst, Sdst, Sdst, D))
        e("v_cvt_pk_bf16_f32 v%d, 0, v%d" % (Sdst, Sdst))
        e("v_mul_f32 v%d, 0x%x, v%d" % (Sdst, SCALE, Sdst))
        e("v_cvt_pk_bf16_f32 v%d, 0, v%d" % (Sdst, Sdst))
    pos = [0, 8, 4, 12]
    def fullsum(r, tmp):
        e("v_add_f32_dpp v%d, v%d, v%d row_ror:1 %s" % (r, r, r, D))
        e("v_add_f32_dpp v%d, v%d, v%d row_ror:2 %s" % (r, r, r, D))
        allred(r, tmp, "v_add_f32")
    def spin(name, loadfn, checkfn, sleep):
        e("s_mov_b32 s%d, %d" % (sCNT, o["LIMIT"]))
        lab("L_spin_" + name)
        if sleep: e("s_sleep %d" % sleep)
        loadfn()
        e("s_waitcnt vmcnt(0)")
        checkfn()
        e("s_cbranch_vccz L_ok_" + name)
        e("s_sub_u32 s%d, s%d, 1" % (sCNT, sCNT))
        e("s_cmp_lg_u32 s%d, 0" % sCNT)
        e("s_cbranch_scc1 L_spin_" + name)

    work = {}
    def at(step, fn): work.setdefault(step, []).append(fn)

    def wq_dots(i):
        def f(step):
            assert i <= landed[0]
            if i == 0: e("v_lshlrev_b32 v%d, 16, v%d" % (X + 1, X))
            dot12(X, X + 1, gslot(i), i); consumed[i] = step
        return f
    for i in range(5): at(max(i + F, F0), wq_dots(i))
    sQ1 = max(4 + F, F0)
    def q_part(step):
        reduce12(PARTQ)
        for k in range(12): e("v_mov_b32 v%d, 0" % (acc + k))
        vm.wait("clr", "w7", force=True)
        e("s_waitcnt lgkmcnt(0)")
        stamp("wqdone")
        e("s_barrier")
        e("s_cmp_lg_u32 s%d, 0" % sW)
        e("s_cbranch_scc1 L_noq0")
        B = slot((step + 3) % NS)
        assert (step + 3) % NS + 6 <= NS, "need 32 free regs"
        for k in range(6):
            prev = slot_owner.get(slot((step + 3) % NS + k)); assert prev is None or prev in consumed
        sum8(vSum, PARTQ, 800, B)
        e("buffer_store_dwordx4 v[%d:%d], v%d, s[%d:%d], s%d offen sc1" % (B, B + 3, vP0st, SWS, SWS + 3, sP0st)); vm.issue("pub0", "w0")
        lab("L_noq0")
        isred("L_nogate")
        vm.wait("gl", "w1", force=True)
        vGs = vGate
        e("v_mov_b32 v%d, 0" % vGs)
        e("s_mov_b32 s%d, 0xffff0000" % sT0)
        e("v_mov_b32 v%d, 0x3f803f80" % vGate1)
        for d in range(5):
            xr = Z + d; gr = Z + 6 + d
            e("v_lshlrev_b32 v%d, 16, v%d" % (T, xr))
            e("v_lshlrev_b32 v%d, 16, v%d" % (T + 1, gr))
            e("v_and_b32 v%d, s%d, v%d" % (T + 2, sT0, xr))
            e("v_and_b32 v%d, s%d, v%d" % (T + 3, sT0, gr))
            e("v_mul_f32 v%d, v%d, v%d" % (T, T, T + 1))
            e("v_mul_f32 v%d, v%d, v%d" % (T + 2, T + 2, T + 3))
            e("v_cvt_pk_bf16_f32 v%d, v%d, v%d" % (T, T, T + 2))
            e("v_dot2c_f32_bf16 v%d, v%d, v%d" % (vGs, T, vGate1))
        fullsum(vGs, T)
        e("v_cvt_pk_bf16_f32 v%d, 0, v%d" % (vGs, vGs))
        e("v_mul_f32 v%d, 0x%x, v%d" % (vGs, LOG2E | 0x80000000, vGs))
        e("v_exp_f32 v%d, v%d" % (vGs, vGs))
        e("v_add_f32 v%d, 1.0, v%d" % (vGs, vGs))
        e("v_rcp_f32 v%d, v%d" % (vGs, vGs))
        e("v_cvt_pk_bf16_f32 v%d, 0, v%d" % (vGs, vGs))
        e("v_sub_f32 v%d, 1.0, v%d" % (vGate1, vGs))
        e("v_cvt_pk_bf16_f32 v%d, 0, v%d" % (vGate1, vGate1))
        lab("L_nogate")
    at(sQ1, q_part)
    def raise_flag(step):
        e("s_cmp_lg_u32 s%d, 0" % sW)
        e("s_cbranch_scc1 L_noflag")
        vm.wait("pub0", "w0", force=True)
        e("s_lshl_b32 s%d, s%d, 3" % (sT0, sH))
        e("s_add_u32 s%d, s%d, s%d" % (sT0, sT0, sJ))
        e("v_mov_b32 v%d, 1" % T)
        e("s_mov_b64 exec, 1")
        e("buffer_store_byte v%d, off, s[%d:%d], s%d sc1" % (T, SDBG, SDBG + 3, sT0)); vm.issue("flag", "w0")
        e("s_mov_b64 exec, -1")
        lab("L_noflag")
        stamp("flag")
    at(sQ1 + 1 + F, raise_flag)
    def is23(labskip):
        e("s_sub_u32 s%d, s%d, 2" % (sT0, sW))
        e("s_cmp_ge_u32 s%d, 2" % sT0)
        e("s_cbranch_scc1 %s" % labskip)
    def ld_fl(): e("buffer_load_dwordx2 v[%d:%d], off, s[%d:%d], s%d sc1" % (Z, Z + 1, SDBG, SDBG + 3, sFl))
    def ck_fl():
        e("v_and_b32 v%d, v%d, v%d" % (T, Z, Z + 1))
        e("v_cmp_ne_u32 vcc, 0x01010101, v%d" % T)
    def qf1(step):
        is23("L_noqf1")
        ld_fl(); vm.issue("fl", "w23")
        lab("L_noqf1")
    at(XF, qf1)
    def qf2(step):
        is23("L_noqf2")
        vm.wait("fl", "w23", force=True)
        ck_fl()
        e("s_cbranch_vccz L_ok_fl")
        spin("fl", ld_fl, ck_fl, 4)
        lab("L_ok_fl")
        for k in range(4):
            e("buffer_load_dwordx4 v[%d:%d], v%d, s[%d:%d], s%d offen offset:%d sc1" % (Z + 4 * k, Z + 4 * k + 3, vP0st, SWS, SWS + 3, sQld, 768 * k)); vm.issue("qd", "w23")
        lab("L_noqf2")
        stamp("flok")
    at(XF + F, qf2)
    XQ = XF + 2 * F
    def qf3(step):
        is23("L_noqf3")
        vm.wait("qd", "w23", force=True)
        for a_, b_ in ((0, 4), (8, 12), (0, 8)):
            e("v_pk_add_f32 v[%d:%d], v[%d:%d], v[%d:%d]" % (Z + a_, Z + a_ + 1, Z + a_, Z + a_ + 1, Z + b_, Z + b_ + 1))
            e("v_pk_add_f32 v[%d:%d], v[%d:%d], v[%d:%d]" % (Z + a_ + 2, Z + a_ + 3, Z + a_ + 2, Z + a_ + 3, Z + b_ + 2, Z + b_ + 3))
        e("v_cvt_pk_bf16_f32 v%d, v%d, v%d" % (Z, Z, Z + 1))
        e("v_cvt_pk_bf16_f32 v%d, v%d, v%d" % (Z + 1, Z + 2, Z + 3))
        e("s_and_b32 s%d, s%d, 1" % (sT0, sW))
        e("s_mul_i32 s%d, s%d, 384" % (sT0, sT0))
        e("v_lshlrev_b32 v%d, 3, v%d" % (T, vLane))
        e("v_add_u32 v%d, s%d, v%d" % (T, sT0, T))
        e("s_mov_b32 exec_hi, 0xffff")
        e("ds_write_b64 v%d, v[%d:%d] offset:%d" % (T, Z, Z + 1, QBUF))
        e("s_mov_b32 exec_hi, -1")
        e("s_waitcnt lgkmcnt(0)")
        lab("L_noqf3")
        e("s_barrier")
        e("v_lshlrev_b32 v%d, 4, v%d" % (T, vC))
        e("v_lshlrev_b32 v%d, 3, v%d" % (T + 1, vC))
        e("ds_read_b128 v[%d:%d], v%d offset:%d" % (QB, QB + 3, T, QBUF))
        e("ds_read_b64 v[%d:%d], v%d offset:%d" % (QB + 4, QB + 5, T + 1, QBUF + 256))
        e("ds_read_b128 v[%d:%d], v%d offset:%d" % (QA, QA + 3, T, QBUF + 384))
        e("ds_read_b64 v[%d:%d], v%d offset:%d" % (QA + 4, QA + 5, T + 1, QBUF + 384 + 256))
        e("s_waitcnt lgkmcnt(0)")
        stamp("qready")
    at(XQ, qf3)
    quads = [(iKB + 4 * q, QB, S + q) for q in range(4)] + [(iKA, QA, S + 4)]
    st = XQ; n = 0
    for g0, Q, Sd in quads:
        while g0 + 3 + F > st or n >= o["KR"]:
            st += 1; n = 0
        at(st, (lambda g0=g0, Q=Q, Sd=Sd: (lambda step: kquad(g0, Q, Sd, step)))()); n += 1
    XK = st
    def softmax(step):
        e("v_max3_f32 v%d, v%d, v%d, v%d" % (T, S, S + 1, S + 2))
        e("v_max_f32 v%d, v%d, v%d" % (T, T, S + 3))
        e("v_mov_b32 v%d, v%d" % (T + 1, S + 4))
        allred2(T, T + 2, T + 1, T + 3, "v_max_f32")
        e("s_lshl_b32 s%d, s%d, 3" % (sT0, sW))
        e("v_mov_b32 v%d, s%d" % (T + 2, sT0))
        e("s_mov_b64 exec, 1")
        e("ds_write_b64 v%d, v[%d:%d] offset:%d" % (T + 2, T, T + 1, WMAX))
        e("s_mov_b64 exec, -1")
        e("v_and_b32 v%d, 7, v%d" % (T + 3, vLane))
        e("v_lshlrev_b32 v%d, 3, v%d" % (T + 3, T + 3))
        e("s_waitcnt lgkmcnt(0)")
        stamp("kdone")
        e("s_barrier")
        e("ds_read_b64 v[%d:%d], v%d offset:%d" % (vMB, vMB + 1, T + 3, WMAX))
        e("s_waitcnt lgkmcnt(0)")
        for pat in ("quad_perm:[1,0,3,2]", "quad_perm:[2,3,0,1]", "row_half_mirror"):
            e("v_max_f32_dpp v%d, v%d, v%d %s %s" % (vMB, vMB, vMB, pat, D))
            e("v_max_f32_dpp v%d, v%d, v%d %s %s" % (vMA, vMA, vMA, pat, D))
        e("s_mov_b32 s%d, 0x%x" % (sT0, LOG2E))
        for q in range(5): e("v_sub_f32 v%d, v%d, v%d" % (S + q, S + q, vMB if q < 4 else vMA))
        for q in range(5): e("v_mul_f32 v%d, s%d, v%d" % (S + q, sT0, S + q))
        for q in range(5): e("v_exp_f32 v%d, v%d" % (S + q, S + q))
        for q in range(5): e("v_cvt_pk_bf16_f32 v%d, 0, v%d" % (S + q, S + q))
        for q in range(5): e("v_lshrrev_b32 v%d, 16, v%d" % (PL + q, S + q))
        e("v_add_f32 v%d, v%d, v%d" % (T, S, S + 1))
        e("v_add_f32 v%d, v%d, v%d" % (T + 1, S + 2, S + 3))
        e("v_add_f32 v%d, v%d, v%d" % (T, T, T + 1))
        e("v_mov_b32 v%d, v%d" % (T + 1, S + 4))
        allred2(T, T + 2, T + 1, T + 3, "v_add_f32")
        e("v_cmp_gt_u32 vcc, 4, v%d" % vLane)
        e("v_mul_f32 v%d, 0x3e000000, v%d" % (T + 2, vMB))
        e("v_mul_f32 v%d, 0x3e000000, v%d" % (T + 3, vMA))
        e("v_cndmask_b32 v%d, v%d, v%d, vcc" % (T, T + 2, T))
        e("v_cndmask_b32 v%d, v%d, v%d, vcc" % (T + 1, T + 3, T + 1))
        e("s_mul_i32 s%d, s%d, 800" % (sT0, sW))
        e("v_lshlrev_b32 v%d, 2, v%d" % (T + 4, vLane))
        e("v_add_u32 v%d, s%d, v%d" % (T + 4, sT0, T + 4))
        e("s_mov_b64 exec, 0xff")
        e("ds_write_b32 v%d, v%d offset:%d" % (T + 4, T, PARTVB + 768))
        e("ds_write_b32 v%d, v%d offset:%d" % (T + 4, T + 1, PARTVA + 768))
        e("s_mov_b64 exec, -1")
        stamp("pready")
    at(XK, softmax)
    XA = o["XA"]
    def ld_all():
        e("v_lshlrev_b32 v%d, 2, v%d" % (Z + 1, vLane))
        e("buffer_load_dword v%d, v%d, s[%d:%d], 0 offen sc1" % (Z, Z + 1, SDBG, SDBG + 3))
    def ck_all(): e("v_cmp_ne_u32 vcc, 0x01010101, v%d" % Z)
    def af1(step):
        isred("L_noaf1")
        ld_all(); vm.issue("af", "w1")
        lab("L_noaf1")
    def af2(step):
        isred("L_noaf2")
        vm.wait("af", "w1", force=True)
        ck_all()
        e("s_cbranch_vccz L_ok_af")
        spin("af", ld_all, ck_all, 8)
        lab("L_ok_af")
        lab("L_noaf2")
    at(XA, af1); at(XA + F, af2)
    def vgrp(t):
        def f(step):
            assert t <= landed[0], ("V not landed", t, step)
            if t < iVB: q, i = 4, t - iVA
            else: q, i = (t - iVB) // 4, (t - iVB) % 4
            dot12(PL + q, S + q, gslot(t), pos[i]); consumed[t] = step
            if t == iVB - 1:
                reduce12(PARTVA)
                for k in range(12): e("v_mov_b32 v%d, 0" % (acc + k))
        return f
    st = XK; n = 0
    for t in range(iVA, iWO):
        while t + F > st or n >= o["VR"]:
            st += 1; n = 0
        at(st, vgrp(t)); n += 1
    XV = st
    assert XV == iWO - 1 + F, XV
    def wo_addr(step):
        e("v_mul_u32_u24 v%d, 0x500, v%d" % (T, vG))
        e("v_lshl_add_u32 v%d, v%d, 4, v%d" % (vWA, vC, T))
        e("v_lshl_add_u32 v%d, v%d, 2, v%d" % (vWB, vC, T))
        e("v_add_u32 v%d, 0x100, v%d" % (vWB, vWB))
    at(XA + 1, wo_addr)
    def v_tail(step):
        stamp("vdone")
        reduce12(PARTVB)
        for k in range(10): e("v_mov_b32 v%d, 0" % (acc + k))
        e("s_waitcnt lgkmcnt(0)")
        e("s_barrier")
        e("s_cmp_ge_u32 s%d, 2" % sW)
        e("s_cbranch_scc1 L_nopub1")
        B = slot((iVB) % NS)
        assert iVB % NS + 6 <= NS
        for k in range(6): assert slot_owner[B + 6 * k] in consumed and slot_owner[B + 6 * k] < iWO
        sum8(vSum2, 0, 800, B)
        e("buffer_store_dwordx4 v[%d:%d], v%d, s[%d:%d], s%d offen sc1" % (B, B + 3, vP1st, SWS, SWS + 3, sP1own)); vm.issue("pub1", "w01")
        lab("L_nopub1")
        stamp("pub1")
    at(XV, v_tail)

    PD = o["PD"]
    RR = Z
    def ld_p1(): e("buffer_load_dwordx4 v[%d:%d], v%d, s[%d:%d], s%d offen sc1" % (RR, RR + 3, vL16, SWS, SWS + 3, sP1ld))
    def ck_x4(r):
        e("v_max3_u32 v%d, v%d, v%d, v%d" % (T, r, r + 1, r + 2))
        e("v_max_u32 v%d, v%d, v%d" % (T, T, r + 3))
        e("v_cmp_eq_u32 vcc, -1, v%d" % T)
    nsteps = NG
    for t in range(F0, max(NG, XV + 1)):
        if t < NG: pump(t)
        else: land(t - F)
        for fn in work.get(t, []): fn(t)
        if o["STAMP"] and t in (12, 36): stamp("s%d" % t)
    if PD < NG: land(PD)
    ld_p1(); vm.issue("p1")
    stamp("polled")
    vm.wait("p1")
    ck_x4(RR)
    e("s_cbranch_vccz L_ok_p1")
    spin("p1", ld_p1, lambda: ck_x4(RR), o["SLEEP1"])
    lab("L_ok_p1")
    vm.all_done()
    stamp("got1")
    e("v_mov_b32_dpp v%d, v%d row_newbcast:7 row_mask:0xf bank_mask:0x3" % (T, RR))
    e("v_mov_b32_dpp v%d, v%d row_newbcast:15 row_mask:0xf bank_mask:0xc" % (T, RR))
    e("v_max_f32_dpp v%d, v%d, v%d row_ror:8 %s" % (T + 1, T, T, D))
    e("v_mov_b32 v%d, v%d" % (T + 2, T + 1))
    e("v_permlane16_swap_b32 v%d, v%d" % (T + 1, T + 2))
    e("v_max_f32 v%d, v%d, v%d" % (T + 1, T + 1, T + 2))
    e("v_mov_b32 v%d, v%d" % (T + 2, T + 1))
    e("v_permlane32_swap_b32 v%d, v%d" % (T + 1, T + 2))
    e("v_max_f32 v%d, v%d, v%d" % (T + 1, T + 1, T + 2))
    e("v_sub_f32 v%d, v%d, v%d" % (T, T, T + 1))
    e("v_mul_f32 v%d, 0x%x, v%d" % (T, LOG2E, T))
    e("v_exp_f32 v%d, v%d" % (T, T))
    for k in range(4): e("v_mul_f32 v%d, v%d, v%d" % (RR + k, RR + k, T))
    e("v_permlane32_swap_b32 v%d, v%d" % (RR, RR + 2))
    e("v_permlane32_swap_b32 v%d, v%d" % (RR + 1, RR + 3))
    e("v_add_f32 v%d, v%d, v%d" % (RR, RR, RR + 2))
    e("v_add_f32 v%d, v%d, v%d" % (RR + 1, RR + 1, RR + 3))
    e("v_permlane16_swap_b32 v%d, v%d" % (RR, RR + 1))
    e("v_add_f32 v%d, v%d, v%d" % (RR, RR, RR + 1))
    e("v_add_f32_dpp v%d, v%d, v%d row_ror:8 %s" % (RR, RR, RR, D))
    e("v_rcp_f32_dpp v%d, v%d row_newbcast:6 %s" % (T + 1, RR, D))
    e("v_mul_f32 v%d, v%d, v%d" % (RR, RR, T + 1))
    e("v_cvt_pk_bf16_f32 v%d, 0, v%d" % (T + 3, RR))
    e("v_lshrrev_b32 v%d, 16, v%d" % (T + 2, T + 3))
    for i in range(6):
        sl = gslot(iWO + i)
        dot12(T + 2, T + 3, sl, i, n=5)
    for k in range(5): e("v_permlane32_swap_b32 v%d, v%d" % (acc + k, acc + k + 5))
    for k in range(5): e("v_add_f32 v%d, v%d, v%d" % (acc + k, acc + k, acc + k + 5))
    e("v_mov_b32 v%d, v%d" % (acc + 5, acc + 4))
    e("v_permlane16_swap_b32 v%d, v%d" % (acc, acc + 1))
    e("v_permlane16_swap_b32 v%d, v%d" % (acc + 2, acc + 3))
    e("v_permlane16_swap_b32 v%d, v%d" % (acc + 4, acc + 5))
    for k in range(3): e("v_add_f32 v%d, v%d, v%d" % (acc + 2 * k, acc + 2 * k, acc + 2 * k + 1))
    for k, a_ in enumerate((vO1, vO2, vO3)): e("ds_write_b32 v%d, v%d offset:%d" % (a_, acc + 2 * k, PART3))
    e("s_waitcnt lgkmcnt(0)")
    e("s_barrier")
    e("s_cmp_lg_u32 s%d, 0" % sW)
    e("s_cbranch_scc1 L_nop2")
    sum8(vL16, PART3, 640, slot(iVB % NS))
    B = slot(iVB % NS)
    e("buffer_store_dwordx4 v[%d:%d], v%d, s[%d:%d], s%d offen sc1" % (B, B + 3, vP2st, SWS, SWS + 3, sP2st))
    stamp("pub2")
    e("s_branch L_fin")
    lab("L_nop2")
    isred("L_fin")
    H = Z
    def ld_p2(): e("buffer_load_dwordx4 v[%d:%d], v%d, s[%d:%d], s%d offen sc1" % (H, H + 3, vL16, SWS, SWS + 3, sP2ld))
    e("s_mov_b32 s%d, %d" % (sCNT, o["LIMIT"]))
    lab("L_poll2")
    ld_p2()
    e("s_waitcnt vmcnt(0)")
    ck_x4(H)
    e("s_cbranch_vccz L_got2")
    if o["SLEEP2"]: e("s_sleep %d" % o["SLEEP2"])
    e("s_sub_u32 s%d, s%d, 1" % (sCNT, sCNT))
    e("s_cmp_lg_u32 s%d, 0" % sCNT)
    e("s_cbranch_scc1 L_poll2")
    lab("L_got2")
    stamp("got2")
    e("v_permlane16_swap_b32 v%d, v%d" % (H, H + 1))
    e("v_permlane16_swap_b32 v%d, v%d" % (H + 2, H + 3))
    e("v_add_f32 v%d, v%d, v%d" % (H, H, H + 1))
    e("v_add_f32 v%d, v%d, v%d" % (H + 2, H + 2, H + 3))
    e("v_permlane32_swap_b32 v%d, v%d" % (H, H + 2))
    for r in (8, 4, 2, 1):
        e("v_add_f32_dpp v%d, v%d, v%d row_ror:%d %s" % (H, H, H, r, D))
        e("v_add_f32_dpp v%d, v%d, v%d row_ror:%d %s" % (H + 2, H + 2, H + 2, r, D))
    e("v_cvt_pk_bf16_f32 v%d, 0, v%d" % (H, H))
    e("v_cvt_pk_bf16_f32 v%d, 0, v%d" % (H + 2, H + 2))
    e("v_mul_f32 v%d, v%d, v%d" % (H, vGate, H))
    e("v_mul_f32 v%d, v%d, v%d" % (H + 2, vGate1, H + 2))
    e("v_cvt_pk_bf16_f32 v%d, 0, v%d" % (H, H))
    e("v_cvt_pk_bf16_f32 v%d, 0, v%d" % (H + 2, H + 2))
    e("v_add_f32 v%d, v%d, v%d" % (H, H, H + 2))
    e("v_cvt_pk_bf16_f32 v%d, v%d, v%d" % (H, H, H))
    e("buffer_store_short v%d, v%d, s[%d:%d], 0 offen" % (H, vOutA, SOUT, SOUT + 3))
    lab("L_fin")
    if o["STAMP"]:
        stamp("end")
        e("s_lshl_b32 s%d, s2, 3" % sT0)
        e("s_add_u32 s%d, s%d, s%d" % (sT0, sT0, sW))
        e("s_lshl_b32 s%d, s%d, 7" % (sT0, sT0))
        e("s_add_u32 s%d, s%d, %d" % (sT0, sT0, STB))
        e("s_mov_b64 exec, 1")
        for k in range(len(stamps)):
            e("v_mov_b32 v%d, s%d" % (T, sST + k))
            e("buffer_store_dword v%d, off, s[%d:%d], s%d offset:%d" % (T, SWS, SWS + 3, sT0, 4 * k))
            e("s_waitcnt vmcnt(0)")
    lab("L_exit")
    e("s_endpgm")

    body, nn = hazard_pass(L)
    head = open(os.path.join(os.path.dirname(os.path.abspath(__file__)), "header.txt")).read()
    txt = head.replace("@LAUNCH@", "; @launch grid=(256,1,1) block=(512,1,1) lds=%d" % LDS)
    txt += ".amdgcn_target \"amdgcn-amd-amdhsa--gfx950\"\n.text\n.globl %s\n.p2align 8\n.type %s,@function\n%s:\n" % (KNAME, KNAME, KNAME)
    txt += "\n".join(body) + "\n"
    txt += """.section .rodata,"a"
.p2align 6
.amdhsa_kernel %s
  .amdhsa_next_free_vgpr %d
  .amdhsa_next_free_sgpr 102
  .amdhsa_accum_offset %d
  .amdhsa_group_segment_fixed_size 0
  .amdhsa_kernarg_size 112
  .amdhsa_user_sgpr_count 2
  .amdhsa_user_sgpr_kernarg_segment_ptr 1
  .amdhsa_system_sgpr_workgroup_id_x 1
.end_amdhsa_kernel
""" % (KNAME, 256, 256)
    return txt, dict(nv=nv, nops=nn, stamps=",".join(stamps), ninstr=len(body), XQ=XQ, XK=XK, XV=XV)

if __name__ == "__main__":
    out = sys.argv[1]
    kw = {}
    for a in sys.argv[2:]:
        k, x = a.split("=")
        kw[k] = int(x, 0)
    txt, info = generate(**kw)
    open(out, "w").write(txt)
    print(out, info)
```

```python
import sys, os
sys.path.insert(0, os.path.dirname(os.path.abspath(__file__)))
from asmlib import *

KNAME = "gated_mix__sliding_block_cached__gqa_block_cached__decode_kernel"
DEF = dict(F=3, NS=24, XF=18, XA=30, PD=49, NT=1, STAMP=0, LIMIT=1 << 15, SLEEP1=0, SLEEP2=0, KR=2, VR=2, F0=0, PRIO=0, MAP=0, TS=99, FT=3, CAP=99, NTM=63, FP=0, POL=0, DA="", DB="", DK=1, DWG=0)

def generate(**kw):
    o = dict(DEF); o.update(kw)
    F, NS, XF = o["F"], o["NS"], o["XF"]
    F0 = o["F0"] or F
    L = []
    def e(t): L.append("    " + t)
    def lab(t): L.append(t + ":")
    def c(t): L.append("    ; " + t)
    vm = VM(e)
    nt = " nt" if o["NT"] else ""

    pAX, pAK, pAV, pAWQ, pAWO, pBX, pBK, pBV = 4, 6, 8, 10, 12, 14, 16, 18
    pBWQ, pBWO, pGW, pOUT, pDBG, pWS = 20, 22, 24, 26, 28, 30
    SWQ, SKB, SKA, SVB, SVA, SWO, SWS, SDBG, SX, SGW, SOUT = 32, 36, 40, 44, 48, 52, 56, 60, 64, 68, 72
    sW, sH, sJ, sCQ = 76, 77, 78, 79
    sT0, sT1, sT2, sT3 = 80, 81, 82, 83
    sOff, sCNT = 84, 85
    sP0st, sP1own, sP2st, sP1ld, sP2ld, sQld, sFl = 86, 87, 88, 89, 90, 91, 92
    sTS = 94
    sST = 4
    stamps = []
    def stamp(name):
        if name == o["DA"] or name == o["DB"]:
            r = 96 if name == o["DA"] else 98
            e("s_memrealtime s[%d:%d]" % (r, r + 1))
            e("s_waitcnt lgkmcnt(0)")
        if not o["STAMP"] or name == "entry": return
        k = len(stamps); assert k < 27
        stamps.append(name)
        e("s_memrealtime s[%d:%d]" % (sTS, sTS + 1))
        e("s_waitcnt lgkmcnt(0)")
        e("s_mov_b32 s%d, s%d" % (sST + k, sTS))

    nxt = [1]
    def al(n=1, align=1):
        while nxt[0] % align: nxt[0] += 1
        r = nxt[0]; nxt[0] += n; return r
    vLane, vG, vC = al(), al(), al()
    vWA, vWB = al(), al()
    vKA, vKB = al(), al()
    vColA, vColB = al(), al()
    vSum, vSum2 = al(), al()
    vL16 = al()
    vP0st, vP1st, vP2st = al(), al(), al()
    vO1, vO2, vO3 = al(), al(), al()
    vOutA, vGate, vGate1, vOffq = al(), al(), al(), al()
    vMB = al(2, 2); vMA = vMB + 1
    X = al(2, 2)
    acc = al(12, 2)
    QB = al(6, 2); QA = al(6, 2)
    S = al(5); PL = al(5)
    P = al(4, 2); R = al(2, 2)
    T = al(8, 2)
    Z = al(16, 2)
    SL = al(6 * NS, 2)
    nv = nxt[0]; assert nv <= 256, nv
    def slot(i): return SL + 6 * i

    PARTQ, PARTVA, PARTVB = 0, 6400, 12800
    QBUF, WMAX, PART3 = 19200, 19968, 20096
    LDS = PART3 + 5120 + 512
    P0, P1, P2, STB = 0, 0x40000, 0xC0000, 0x180000
    OOB = 0x40000000
    LOG2E = 0x3fb8aa3b
    SCALE = 0x3d93cd3a
    D = "row_mask:0xf bank_mask:0xf"

    iWQ, iKB, iKA, iVA, iVB, iWO, NG = 0, 5, 21, 25, 29, 45, 51
    def gslot(t):
        if t < iWO: return slot(t % NS)
        return slot(WOS[t - iWO])
    WOS = [(iKA + 0) % NS, (iKA + 1) % NS, (iKA + 2) % NS, (iKA + 3) % NS, (iVA + 0) % NS, (iVA + 1) % NS]
    consumed = {}
    slot_owner = {}
    offstate = {"v": None}
    def soff(val):
        if val == 0: return "0"
        if offstate["v"] != val:
            e("s_mov_b32 s%d, %d" % (sOff, val)); offstate["v"] = val
        return "s%d" % sOff
    def issue(t):
        sl = gslot(t)
        prev = slot_owner.get(sl)
        assert prev is None or prev in consumed, ("slot busy", t, prev)
        slot_owner[sl] = t
        kind = 0 if t < iKB else 1 if t < iKA else 2 if t < iVA else 3 if t < iVB else 4 if t < iWO else 5
        nt = (" nt" if o["NT"] else "") if (o["NTM"] >> kind) & 1 else ["", " sc1", " sc0 sc1", " sc0", " sc1 nt", " sc0 sc1 nt"][o["POL"]]
        if t < iKB:
            so = soff(t * 49152)
            e("buffer_load_dwordx4 v[%d:%d], v%d, s[%d:%d], %s offen%s" % (sl, sl + 3, vWA, SWQ, SWQ + 3, so, nt)); vm.issue("g%d" % t)
            e("buffer_load_dwordx2 v[%d:%d], v%d, s[%d:%d], %s offen%s" % (sl + 4, sl + 5, vWB, SWQ, SWQ + 3, so, nt)); vm.issue("g%d" % t)
        elif t < iWO:
            if t < iKA: srd, k = SKB, t - iKB
            elif t < iVA: srd, k = SKA, t - iKA
            elif t < iVB: srd, k = SVA, t - iVA
            else: srd, k = SVB, t - iVB
            so = soff((k // 3) * 4608); imm = (k % 3) * 1536
            e("buffer_load_dwordx4 v[%d:%d], v%d, s[%d:%d], %s offen offset:%d%s" % (sl, sl + 3, vKA, srd, srd + 3, so, imm, nt)); vm.issue("g%d" % t)
            e("buffer_load_dwordx2 v[%d:%d], v%d, s[%d:%d], %s offen offset:%d%s" % (sl + 4, sl + 5, vKB, srd, srd + 3, so, imm, nt)); vm.issue("g%d" % t)
        else:
            k = t - iWO
            so = soff(k * 5120)
            e("buffer_load_dwordx4 v[%d:%d], v%d, s[%d:%d], %s offen%s" % (sl, sl + 3, vWA, SWO, SWO + 3, so, nt)); vm.issue("g%d" % t)
            e("buffer_load_dword v%d, v%d, s[%d:%d], %s offen%s" % (sl + 4, vWB, SWO, SWO + 3, so, nt)); vm.issue("g%d" % t)
    landed = [-1]
    def land(t):
        if t > landed[0]:
            vm.wait("g%d" % t); landed[0] = t
    issued = [0]
    def need(t):
        f = F if t < o["TS"] else o["FT"]
        if o["FP"] and t < o["TS"]: f = int(str(o["FP"])[t % len(str(o["FP"]))])
        return min(t - f, o["CAP"])
    def pump(t):
        assert issued[0] == t
        if need(t) >= 0 and t >= F0: land(need(t))
        issue(t); issued[0] = t + 1

    def srd(d, size):
        e("s_mov_b32 s%d, 0x%x" % (d + 2, size)); e("s_mov_b32 s%d, 0x20000" % (d + 3))
    def srd_off(d, base, soffr, size):
        e("s_add_u32 s%d, s%d, s%d" % (d, base, soffr))
        e("s_addc_u32 s%d, s%d, 0" % (d + 1, base + 1))
        srd(d, size)
    def srd_cp(d, base, size):
        e("s_mov_b32 s%d, s%d" % (d, base)); e("s_mov_b32 s%d, s%d" % (d + 1, base + 1)); srd(d, size)

    e("s_cmp_ge_u32 s2, 256")
    e("s_cbranch_scc1 L_exit")
    if o["DA"] == "entry": e("s_memrealtime s[96:97]")
    e("s_load_dwordx16 s[4:19], s[0:1], 0")
    e("s_load_dwordx8 s[20:27], s[0:1], 64")
    e("s_load_dwordx4 s[28:31], s[0:1], 96")
    e("v_lshrrev_b32 v%d, 6, v0" % T)
    e("v_and_b32 v%d, 63, v0" % vLane)
    e("v_readfirstlane_b32 s%d, v%d" % (sW, T))
    e("v_and_b32 v%d, 15, v0" % vC)
    e("v_lshrrev_b32 v%d, 4, v%d" % (vG, vLane))
    if o["MAP"] == 0:
        e("s_and_b32 s%d, s2, 7" % sT0)
        e("s_lshl_b32 s%d, s%d, 2" % (sT0, sT0))
        e("s_bfe_u32 s%d, s2, 0x20003" % sT1)
        e("s_add_u32 s%d, s%d, s%d" % (sH, sT0, sT1))
        e("s_lshr_b32 s%d, s2, 5" % sJ)
    elif o["MAP"] == 1:
        e("s_lshr_b32 s%d, s2, 3" % sH)
        e("s_and_b32 s%d, s2, 7" % sJ)
    elif o["MAP"] == 2:
        e("s_lshr_b32 s%d, s2, 3" % sH)
        e("s_add_u32 s%d, s2, s%d" % (sJ, sH))
        e("s_and_b32 s%d, s%d, 7" % (sJ, sJ))
    e("s_and_b32 s%d, s%d, 3" % (sCQ, sJ))
    e("s_mul_i32 s%d, s%d, 160" % (sT0, sCQ))
    e("s_mul_i32 s%d, s%d, 20" % (sT1, sW))
    e("s_add_u32 s%d, s%d, s%d" % (sT0, sT0, sT1))
    e("v_lshl_add_u32 v%d, v%d, 2, v%d" % (T, vC, vG))
    e("v_add_u32 v%d, s%d, v%d" % (T, sT0, T))
    e("v_lshlrev_b32 v%d, 1, v%d" % (T, T))
    e("v_mul_u32_u24 v%d, 0x3000, v%d" % (T + 2, vG))
    e("v_lshl_add_u32 v%d, v%d, 4, v%d" % (vWA, vC, T + 2))
    e("v_lshl_add_u32 v%d, v%d, 3, v%d" % (vWB, vC, T + 2))
    e("v_add_u32 v%d, 0x100, v%d" % (vWB, vWB))
    e("v_mul_u32_u24 v%d, 0x180, v%d" % (T + 2, vG))
    e("v_lshl_add_u32 v%d, v%d, 4, v%d" % (vKA, vC, T + 2))
    e("v_lshl_add_u32 v%d, v%d, 3, v%d" % (vKB, vC, T + 2))
    e("v_add_u32 v%d, 0x100, v%d" % (vKB, vKB))
    e("s_mul_i32 s%d, s%d, 12288" % (sT0, sT0))
    e("s_mul_i32 s%d, s%d, 384" % (sT1, sH))
    e("s_add_u32 s%d, s%d, s%d" % (sT0, sT0, sT1))
    e("s_lshl_b32 s%d, s%d, 3" % (sT1, sJ))
    e("s_add_u32 s%d, s%d, s%d" % (sT1, sT1, sW))
    e("s_mul_i32 s%d, s%d, 0x180000" % (sT3, sH))
    e("s_mul_i32 s%d, s%d, %d" % (sT2, sT1, 64 * 384))
    e("s_add_u32 s%d, s%d, s%d" % (sT2, sT2, sT3))
    e("s_mul_i32 s%d, s%d, %d" % (sT1, sT1, 16 * 384))
    e("s_add_u32 s%d, s%d, s%d" % (sT3, sT3, sT1))
    e("s_add_u32 s%d, s%d, %d" % (sT3, sT3, 3072 * 384))
    e("s_cmp_lt_u32 s%d, 4" % sJ)
    e("s_waitcnt lgkmcnt(0)")
    e("s_cselect_b32 s%d, s%d, s%d" % (SWQ, pBWQ, pAWQ))
    e("s_cselect_b32 s%d, s%d, s%d" % (SWQ + 1, pBWQ + 1, pAWQ + 1))
    e("s_cselect_b32 s%d, s%d, s%d" % (SWO, pBWO, pAWO))
    e("s_cselect_b32 s%d, s%d, s%d" % (SWO + 1, pBWO + 1, pAWO + 1))
    srd_off(SWQ, SWQ, sT0, 19 * 12288 + 384)
    srd_cp(SX, pAX, 1280)
    e("buffer_load_ushort v%d, v%d, s[%d:%d], 0 offen" % (X, T, SX, SX + 3)); vm.issue("x")
    srd_off(SKB, pBK, sT2, 64 * 384)
    for t in range(min(F0, iKB)): pump(t)
    srd_off(SKA, pAK, sT3, 16 * 384)
    srd_off(SVB, pBV, sT2, 64 * 384)
    srd_off(SVA, pAV, sT3, 16 * 384)
    for t in range(iKB, F0): pump(t)
    srd_cp(SWS, pWS, 0x10000000)
    srd_cp(SDBG, pDBG, 256)
    srd_cp(SGW, pGW, 1280)
    srd_cp(SOUT, pOUT, 1280)
    e("s_mul_i32 s%d, s%d, 192" % (sT0, sH))
    e("s_mul_i32 s%d, s%d, 24" % (sT1, sW))
    e("s_add_u32 s%d, s%d, s%d" % (sT0, sT0, sT1))
    e("s_mul_i32 s%d, s%d, 1280" % (sT0, sT0))
    e("s_mul_i32 s%d, s%d, 320" % (sT1, sCQ))
    e("s_add_u32 s%d, s%d, s%d" % (sT0, sT0, sT1))
    srd_off(SWO, SWO, sT0, 23 * 1280 + 320)
    if o["STAMP"]:
        for k in range(27): e("s_mov_b32 s%d, 0" % (sST + k))
    stamp("start")
    e("s_lshr_b32 s%d, s%d, 2" % (sT0, sJ))
    e("s_lshl_b32 s%d, s%d, 1" % (sT1, sH))
    e("s_add_u32 s%d, s%d, s%d" % (sT2, sT1, sT0))
    e("s_mul_i32 s%d, s%d, 3072" % (sP0st, sT2))
    e("s_mul_i32 s%d, s%d, 768" % (sT3, sCQ))
    e("s_add_u32 s%d, s%d, s%d" % (sP0st, sP0st, sT3))
    e("s_lshl_b32 s%d, s%d, 3" % (sP1ld, sT2))
    e("s_add_u32 s%d, s%d, s%d" % (sP1ld, sP1ld, sW))
    e("s_lshl_b32 s%d, s%d, 10" % (sP1ld, sP1ld))
    e("s_add_u32 s%d, s%d, 0x%x" % (sP1ld, sP1ld, P1))
    e("s_lshl_b32 s%d, s%d, 9" % (sT3, sT0))
    e("s_lshl_b32 s%d, s%d, 4" % (sP2st, sH))
    e("s_sub_u32 s%d, s%d, s%d" % (sP2st, sP2st, sT3))
    e("s_mul_i32 s%d, s%d, 40960" % (sT3, sCQ))
    e("s_add_u32 s%d, s%d, s%d" % (sP2st, sP2st, sT3))
    e("s_add_u32 s%d, s%d, 0x%x" % (sP2st, sP2st, P2 + 512))
    e("s_and_b32 s%d, s%d, 1" % (sT3, sW))
    e("s_add_u32 s%d, s%d, s%d" % (sT2, sT1, sT3))
    e("s_lshl_b32 s%d, s%d, 13" % (sP1own, sT2))
    e("s_lshl_b32 s%d, s%d, 7" % (sT3, sJ))
    e("s_add_u32 s%d, s%d, s%d" % (sP1own, sP1own, sT3))
    e("s_add_u32 s%d, s%d, 0x%x" % (sP1own, sP1own, P1))
    e("s_mul_i32 s%d, s%d, 3072" % (sQld, sT2))
    e("s_lshl_b32 s%d, s%d, 3" % (sFl, sH))
    e("s_lshl_b32 s%d, s2, 10" % sP2ld)
    e("s_add_u32 s%d, s%d, 0x%x" % (sP2ld, sP2ld, P2))
    e("v_lshlrev_b32 v%d, 4, v%d" % (vL16, vLane))
    e("v_mul_u32_u24 v%d, 43, v%d" % (T, vLane))
    e("v_lshrrev_b32 v%d, 8, v%d" % (T, T))
    e("v_mul_u32_u24 v%d, 6, v%d" % (T + 1, T))
    e("v_sub_u32 v%d, v%d, v%d" % (T + 1, vLane, T + 1))
    e("v_lshlrev_b32 v%d, 4, v%d" % (T + 1, T + 1))
    e("v_lshl_add_u32 v%d, v%d, 10, v%d" % (T, T, T + 1))
    e("v_and_b32 v%d, 7, v%d" % (T + 1, vLane))
    e("v_lshlrev_b32 v%d, 10, v%d" % (T + 1, T + 1))
    e("v_lshrrev_b32 v%d, 3, v%d" % (T + 2, vLane))
    e("v_lshl_add_u32 v%d, v%d, 4, v%d" % (T + 1, T + 2, T + 1))
    e("v_cmp_gt_u32 vcc, 48, v%d" % vLane)
    e("v_cndmask_b32 v%d, v%d, v%d, vcc" % (vP1st, T + 1, T))
    e("v_mov_b32 v%d, 0x%x" % (T + 3, OOB))
    e("v_cndmask_b32 v%d, v%d, v%d, vcc" % (vP0st, T + 3, vL16))
    e("v_lshlrev_b32 v%d, 4, v%d" % (T + 2, T + 2))
    e("v_add_u32 v%d, %d, v%d" % (T + 2, 768 - 96, T + 2))
    e("v_cndmask_b32 v%d, v%d, v%d, vcc" % (vSum, T + 2, vL16))
    e("v_lshlrev_b32 v%d, 10, v%d" % (T, vLane))
    e("v_cmp_gt_u32 vcc, 40, v%d" % vLane)
    e("v_cndmask_b32 v%d, v%d, v%d, vcc" % (vP2st, T + 3, T))
    e("s_cmp_lg_u32 s%d, 7" % sW)
    e("s_cbranch_scc1 L_noclear")
    for k in range(4): e("v_mov_b32 v%d, -1" % (Z + k))
    e("s_sub_u32 s%d, s%d, 8192" % (sT0, sP1own))
    e("buffer_store_dwordx4 v[%d:%d], v%d, s[%d:%d], s%d offen sc1" % (Z, Z + 3, vP1st, SWS, SWS + 3, sT0)); vm.issue("clr", "w7")
    e("buffer_store_dwordx4 v[%d:%d], v%d, s[%d:%d], s%d offen sc1" % (Z, Z + 3, vP1st, SWS, SWS + 3, sP1own)); vm.issue("clr", "w7")
    e("buffer_store_dwordx4 v[%d:%d], v%d, s[%d:%d], s%d offen sc1" % (Z, Z + 3, vP2st, SWS, SWS + 3, sP2st)); vm.issue("clr", "w7")
    lab("L_noclear")
    for k in range(12): e("v_mov_b32 v%d, 0" % (acc + k))
    e("s_mul_i32 s%d, s%d, 800" % (sT0, sW))
    e("v_mul_u32_u24 v%d, 3, v%d" % (T, vG))
    for dst, add in ((vColA, 0), (vColB, 2)):
        if add: e("v_add_u32 v%d, %d, v%d" % (T, add, T))
        e("v_lshl_add_u32 v%d, v%d, 3, v%d" % (T + 1, vC, T))
        e("v_lshl_add_u32 v%d, v%d, 2, v%d" % (T + 2, vC, T))
        e("v_add_u32 v%d, 120, v%d" % (T + 2, T + 2))
        e("v_cmp_gt_u32 vcc, 8, v%d" % T)
        e("v_cndmask_b32 v%d, v%d, v%d, vcc" % (T + 1, T + 2, T + 1))
        e("v_lshlrev_b32 v%d, 2, v%d" % (T + 1, T + 1))
        e("v_add_u32 v%d, s%d, v%d" % (dst, sT0, T + 1))
    e("s_mov_b32 s%d, %d" % (sT0, PARTVB))
    e("s_bitcmp1_b32 s%d, 0" % sW)
    e("s_cselect_b32 s%d, %d, s%d" % (sT0, PARTVA, sT0))
    e("v_add_u32 v%d, s%d, v%d" % (vSum2, sT0, vSum))
    e("s_mul_i32 s%d, s%d, 640" % (sT0, sW))
    e("v_lshrrev_b32 v%d, 1, v%d" % (T + 3, vG))
    e("v_mul_u32_u24 v%d, 5, v%d" % (T + 3, T + 3))
    e("v_and_b32 v%d, 1, v%d" % (T + 4, vG))
    for k, dst in enumerate((vO1, vO2, vO3)):
        if k < 2: e("v_add_u32 v%d, v%d, v%d" % (T, T + 3, T + 4))
        else: e("v_mov_b32 v%d, v%d" % (T, T + 3))
        if k: e("v_add_u32 v%d, %d, v%d" % (T, 2 * k, T))
        e("v_lshl_add_u32 v%d, v%d, 3, v%d" % (T + 1, vC, T))
        e("v_lshl_add_u32 v%d, v%d, 1, v%d" % (T + 2, vC, T))
        e("v_add_u32 v%d, 120, v%d" % (T + 2, T + 2))
        e("v_cmp_gt_u32 vcc, 8, v%d" % T)
        e("v_cndmask_b32 v%d, v%d, v%d, vcc" % (T + 1, T + 2, T + 1))
        e("v_lshlrev_b32 v%d, 2, v%d" % (T + 1, T + 1))
        e("v_add_u32 v%d, s%d, v%d" % (dst, sT0, T + 1))
    e("s_lshl_b32 s%d, s2, 3" % sT0)
    e("v_lshlrev_b32 v%d, 1, v%d" % (T, vG))
    e("v_add_u32 v%d, s%d, v%d" % (T, sT0, T))
    e("v_mov_b32 v%d, 0x%x" % (T + 1, OOB))
    e("v_cmp_eq_u32 vcc, 0, v%d" % vC)
    e("v_cndmask_b32 v%d, v%d, v%d, vcc" % (vOutA, T + 1, T))
    def isred(labskip):
        e("s_cmp_lg_u32 s%d, 1" % sW)
        e("s_cbranch_scc1 %s" % labskip)
        e("s_cmp_ge_u32 s2, 160")
        e("s_cbranch_scc1 %s" % labskip)
    isred("L_nogl")
    e("v_lshlrev_b32 v%d, 2, v%d" % (T + 1, vLane))
    e("buffer_load_dwordx4 v[%d:%d], v%d, s[%d:%d], 0 offen" % (Z, Z + 3, vL16, SX, SX + 3)); vm.issue("gl", "w1")
    e("buffer_load_dword v%d, v%d, s[%d:%d], 0 offen offset:1024" % (Z + 4, T + 1, SX, SX + 3)); vm.issue("gl", "w1")
    e("buffer_load_dwordx4 v[%d:%d], v%d, s[%d:%d], 0 offen" % (Z + 6, Z + 9, vL16, SGW, SGW + 3)); vm.issue("gl", "w1")
    e("buffer_load_dword v%d, v%d, s[%d:%d], 0 offen offset:1024" % (Z + 10, T + 1, SGW, SGW + 3)); vm.issue("gl", "w1")
    lab("L_nogl")

    def dot12(sel_lo, sel_hi, sl, bc, n=6, regs=None):
        for d in range(n):
            r = regs[d] if regs else sl + d
            e("v_dot2c_f32_bf16_dpp v%d, v%d, v%d row_newbcast:%d row_mask:0xf bank_mask:0xf" % (acc + 2 * d, sel_lo, r, bc))
            e("v_dot2c_f32_bf16_dpp v%d, v%d, v%d row_newbcast:%d row_mask:0xf bank_mask:0xf" % (acc + 2 * d + 1, sel_hi, r, bc))
    def reduce12(base):
        for k in range(6): e("v_permlane32_swap_b32 v%d, v%d" % (acc + k, acc + k + 6))
        for k in range(6): e("v_add_f32 v%d, v%d, v%d" % (acc + k, acc + k, acc + k + 6))
        for k in range(3): e("v_permlane16_swap_b32 v%d, v%d" % (acc + k, acc + k + 3))
        for k in range(3): e("v_add_f32 v%d, v%d, v%d" % (acc + k, acc + k, acc + k + 3))
        e("ds_write_b32 v%d, v%d offset:%d" % (vColA, acc, base))
        e("ds_write_b32 v%d, v%d offset:%d" % (vColA, acc + 1, base + 4))
        e("ds_write_b32 v%d, v%d offset:%d" % (vColB, acc + 2, base))
    def sum8(addr, base, stride, B):
        for k in range(8):
            e("ds_read_b128 v[%d:%d], v%d offset:%d" % (B + 4 * k, B + 4 * k + 3, addr, base + k * stride))
        def pk(a, b):
            e("v_pk_add_f32 v[%d:%d], v[%d:%d], v[%d:%d]" % (a, a + 1, a, a + 1, b, b + 1))
            e("v_pk_add_f32 v[%d:%d], v[%d:%d], v[%d:%d]" % (a + 2, a + 3, a + 2, a + 3, b + 2, b + 3))
        e("s_waitcnt lgkmcnt(6)"); pk(B, B + 4)
        e("s_waitcnt lgkmcnt(4)"); pk(B + 8, B + 12)
        e("s_waitcnt lgkmcnt(2)"); pk(B + 16, B + 20); pk(B, B + 8)
        e("s_waitcnt lgkmcnt(0)"); pk(B + 24, B + 28); pk(B + 16, B + 24); pk(B, B + 16)
    def allred(r, tmp, op):
        e("%s_dpp v%d, v%d, v%d row_ror:4 %s" % (op, r, r, r, D))
        e("%s_dpp v%d, v%d, v%d row_ror:8 %s" % (op, r, r, r, D))
        e("v_mov_b32 v%d, v%d" % (tmp, r))
        e("v_permlane16_swap_b32 v%d, v%d" % (r, tmp))
        e("%s v%d, v%d, v%d" % (op, r, r, tmp))
        e("v_mov_b32 v%d, v%d" % (tmp, r))
        e("v_permlane32_swap_b32 v%d, v%d" % (r, tmp))
        e("%s v%d, v%d, v%d" % (op, r, r, tmp))
    def allred2(r0, t0, r1, t1, op):
        for rot in (4, 8):
            e("%s_dpp v%d, v%d, v%d row_ror:%d %s" % (op, r0, r0, r0, rot, D))
            e("%s_dpp v%d, v%d, v%d row_ror:%d %s" % (op, r1, r1, r1, rot, D))
        for sw in ("v_permlane16_swap_b32", "v_permlane32_swap_b32"):
            e("v_mov_b32 v%d, v%d" % (t0, r0)); e("v_mov_b32 v%d, v%d" % (t1, r1))
            e("%s v%d, v%d" % (sw, r0, t0)); e("%s v%d, v%d" % (sw, r1, t1))
            e("%s v%d, v%d, v%d" % (op, r0, r0, t0)); e("%s v%d, v%d, v%d" % (op, r1, r1, t1))
    def kquad(g0, Q, Sdst, step):
        for i in range(4):
            assert g0 + i <= landed[0], ("K not landed", g0 + i, step)
            e("v_mov_b32 v%d, 0" % (P + i))
        for d in range(6):
            for i in range(4):
                e("v_dot2c_f32_bf16 v%d, v%d, v%d" % (P + i, gslot(g0 + i) + d, Q + d))
        for i in range(4): consumed[g0 + i] = step
        e("v_add_f32_dpp v%d, v%d, v%d row_ror:8 %s" % (R, P, P, D))
        e("v_add_f32_dpp v%d, v%d, v%d row_ror:8 %s" % (R + 1, P + 2, P + 2, D))
        e("v_add_f32_dpp v%d, v%d, v%d row_ror:8 row_mask:0xf bank_mask:0xc" % (R, P + 1, P + 1))
        e("v_add_f32_dpp v%d, v%d, v%d row_ror:8 row_mask:0xf bank_mask:0xc" % (R + 1, P + 3, P + 3))
        e("v_add_f32_dpp v%d, v%d, v%d row_half_mirror %s" % (Sdst, R, R, D))
        e("v_add_f32_dpp v%d, v%d, v%d row_half_mirror row_mask:0xf bank_mask:0xa" % (Sdst, R + 1, R + 1))
        e("v_add_f32_dpp v%d, v%d, v%d quad_perm:[2,3,0,1] %s" % (Sdst, Sdst, Sdst, D))
        e("v_add_f32_dpp v%d, v%d, v%d quad_perm:[1,0,3,2] %s" % (Sdst, Sdst, Sdst, D))
        e("v_cvt_pk_bf16_f32 v%d, 0, v%d" % (Sdst, Sdst))
        e("v_mul_f32 v%d, 0x%x, v%d" % (Sdst, SCALE, Sdst))
        e("v_cvt_pk_bf16_f32 v%d, 0, v%d" % (Sdst, Sdst))
    pos = [0, 8, 4, 12]
    def fullsum(r, tmp):
        e("v_add_f32_dpp v%d, v%d, v%d row_ror:1 %s" % (r, r, r, D))
        e("v_add_f32_dpp v%d, v%d, v%d row_ror:2 %s" % (r, r, r, D))
        allred(r, tmp, "v_add_f32")
    def spin(name, loadfn, checkfn, sleep):
        e("s_mov_b32 s%d, %d" % (sCNT, o["LIMIT"]))
        lab("L_spin_" + name)
        if sleep: e("s_sleep %d" % sleep)
        loadfn()
        e("s_waitcnt vmcnt(0)")
        checkfn()
        e("s_cbranch_vccz L_ok_" + name)
        e("s_sub_u32 s%d, s%d, 1" % (sCNT, sCNT))
        e("s_cmp_lg_u32 s%d, 0" % sCNT)
        e("s_cbranch_scc1 L_spin_" + name)

    work = {}
    def at(step, fn): work.setdefault(step, []).append(fn)

    def wq_dots(i):
        def f(step):
            assert i <= landed[0]
            if i == 0: e("v_lshlrev_b32 v%d, 16, v%d" % (X + 1, X))
            dot12(X, X + 1, gslot(i), i); consumed[i] = step
        return f
    for i in range(5): at(max(i + F, F0), wq_dots(i))
    sQ1 = max(4 + F, F0)
    def q_part(step):
        reduce12(PARTQ)
        for k in range(12): e("v_mov_b32 v%d, 0" % (acc + k))
        vm.wait("clr", "w7", force=True)
        e("s_waitcnt lgkmcnt(0)")
        stamp("wqdone")
        e("s_barrier")
        e("s_cmp_lg_u32 s%d, 0" % sW)
        e("s_cbranch_scc1 L_noq0")
        B = slot((step + 3) % NS)
        assert (step + 3) % NS + 6 <= NS, "need 32 free regs"
        for k in range(6):
            prev = slot_owner.get(slot((step + 3) % NS + k)); assert prev is None or prev in consumed
        sum8(vSum, PARTQ, 800, B)
        e("buffer_store_dwordx4 v[%d:%d], v%d, s[%d:%d], s%d offen sc1" % (B, B + 3, vP0st, SWS, SWS + 3, sP0st)); vm.issue("pub0", "w0")
        lab("L_noq0")
        isred("L_nogate")
        vm.wait("gl", "w1", force=True)
        vGs = vGate
        e("v_mov_b32 v%d, 0" % vGs)
        e("s_mov_b32 s%d, 0xffff0000" % sT0)
        e("v_mov_b32 v%d, 0x3f803f80" % vGate1)
        for d in range(5):
            xr = Z + d; gr = Z + 6 + d
            e("v_lshlrev_b32 v%d, 16, v%d" % (T, xr))
            e("v_lshlrev_b32 v%d, 16, v%d" % (T + 1, gr))
            e("v_and_b32 v%d, s%d, v%d" % (T + 2, sT0, xr))
            e("v_and_b32 v%d, s%d, v%d" % (T + 3, sT0, gr))
            e("v_mul_f32 v%d, v%d, v%d" % (T, T, T + 1))
            e("v_mul_f32 v%d, v%d, v%d" % (T + 2, T + 2, T + 3))
            e("v_cvt_pk_bf16_f32 v%d, v%d, v%d" % (T, T, T + 2))
            e("v_dot2c_f32_bf16 v%d, v%d, v%d" % (vGs, T, vGate1))
        fullsum(vGs, T)
        e("v_cvt_pk_bf16_f32 v%d, 0, v%d" % (vGs, vGs))
        e("v_mul_f32 v%d, 0x%x, v%d" % (vGs, LOG2E | 0x80000000, vGs))
        e("v_exp_f32 v%d, v%d" % (vGs, vGs))
        e("v_add_f32 v%d, 1.0, v%d" % (vGs, vGs))
        e("v_rcp_f32 v%d, v%d" % (vGs, vGs))
        e("v_cvt_pk_bf16_f32 v%d, 0, v%d" % (vGs, vGs))
        e("v_sub_f32 v%d, 1.0, v%d" % (vGate1, vGs))
        e("v_cvt_pk_bf16_f32 v%d, 0, v%d" % (vGate1, vGate1))
        lab("L_nogate")
    at(sQ1, q_part)
    def raise_flag(step):
        e("s_cmp_lg_u32 s%d, 0" % sW)
        e("s_cbranch_scc1 L_noflag")
        vm.wait("pub0", "w0", force=True)
        e("s_lshl_b32 s%d, s%d, 3" % (sT0, sH))
        e("s_add_u32 s%d, s%d, s%d" % (sT0, sT0, sJ))
        e("v_mov_b32 v%d, 1" % T)
        e("s_mov_b64 exec, 1")
        e("buffer_store_byte v%d, off, s[%d:%d], s%d sc1" % (T, SDBG, SDBG + 3, sT0)); vm.issue("flag", "w0")
        e("s_mov_b64 exec, -1")
        lab("L_noflag")
        stamp("flag")
    at(sQ1 + 1 + F, raise_flag)
    def is23(labskip):
        e("s_sub_u32 s%d, s%d, 2" % (sT0, sW))
        e("s_cmp_ge_u32 s%d, 2" % sT0)
        e("s_cbranch_scc1 %s" % labskip)
    def ld_fl(): e("buffer_load_dwordx2 v[%d:%d], off, s[%d:%d], s%d sc1" % (Z, Z + 1, SDBG, SDBG + 3, sFl))
    def ck_fl():
        e("v_and_b32 v%d, v%d, v%d" % (T, Z, Z + 1))
        e("v_cmp_ne_u32 vcc, 0x01010101, v%d" % T)
    def qf1(step):
        is23("L_noqf1")
        ld_fl(); vm.issue("fl", "w23")
        lab("L_noqf1")
    at(XF, qf1)
    def qf2(step):
        is23("L_noqf2")
        vm.wait("fl", "w23", force=True)
        ck_fl()
        e("s_cbranch_vccz L_ok_fl")
        spin("fl", ld_fl, ck_fl, 4)
        lab("L_ok_fl")
        for k in range(4):
            e("buffer_load_dwordx4 v[%d:%d], v%d, s[%d:%d], s%d offen offset:%d sc1" % (Z + 4 * k, Z + 4 * k + 3, vP0st, SWS, SWS + 3, sQld, 768 * k)); vm.issue("qd", "w23")
        lab("L_noqf2")
        stamp("flok")
    at(XF + F, qf2)
    XQ = XF + 2 * F
    def qf3(step):
        is23("L_noqf3")
        vm.wait("qd", "w23", force=True)
        for a_, b_ in ((0, 4), (8, 12), (0, 8)):
            e("v_pk_add_f32 v[%d:%d], v[%d:%d], v[%d:%d]" % (Z + a_, Z + a_ + 1, Z + a_, Z + a_ + 1, Z + b_, Z + b_ + 1))
            e("v_pk_add_f32 v[%d:%d], v[%d:%d], v[%d:%d]" % (Z + a_ + 2, Z + a_ + 3, Z + a_ + 2, Z + a_ + 3, Z + b_ + 2, Z + b_ + 3))
        e("v_cvt_pk_bf16_f32 v%d, v%d, v%d" % (Z, Z, Z + 1))
        e("v_cvt_pk_bf16_f32 v%d, v%d, v%d" % (Z + 1, Z + 2, Z + 3))
        e("s_and_b32 s%d, s%d, 1" % (sT0, sW))
        e("s_mul_i32 s%d, s%d, 384" % (sT0, sT0))
        e("v_lshlrev_b32 v%d, 3, v%d" % (T, vLane))
        e("v_add_u32 v%d, s%d, v%d" % (T, sT0, T))
        e("s_mov_b32 exec_hi, 0xffff")
        e("ds_write_b64 v%d, v[%d:%d] offset:%d" % (T, Z, Z + 1, QBUF))
        e("s_mov_b32 exec_hi, -1")
        e("s_waitcnt lgkmcnt(0)")
        lab("L_noqf3")
        e("s_barrier")
        e("v_lshlrev_b32 v%d, 4, v%d" % (T, vC))
        e("v_lshlrev_b32 v%d, 3, v%d" % (T + 1, vC))
        e("ds_read_b128 v[%d:%d], v%d offset:%d" % (QB, QB + 3, T, QBUF))
        e("ds_read_b64 v[%d:%d], v%d offset:%d" % (QB + 4, QB + 5, T + 1, QBUF + 256))
        e("ds_read_b128 v[%d:%d], v%d offset:%d" % (QA, QA + 3, T, QBUF + 384))
        e("ds_read_b64 v[%d:%d], v%d offset:%d" % (QA + 4, QA + 5, T + 1, QBUF + 384 + 256))
        e("s_waitcnt lgkmcnt(0)")
        stamp("qready")
    at(XQ, qf3)
    quads = [(iKB + 4 * q, QB, S + q) for q in range(4)] + [(iKA, QA, S + 4)]
    st = XQ; n = 0
    for g0, Q, Sd in quads:
        while g0 + 3 + F > st or n >= o["KR"]:
            st += 1; n = 0
        at(st, (lambda g0=g0, Q=Q, Sd=Sd: (lambda step: kquad(g0, Q, Sd, step)))()); n += 1
    XK = st
    def softmax(step):
        e("v_max3_f32 v%d, v%d, v%d, v%d" % (T, S, S + 1, S + 2))
        e("v_max_f32 v%d, v%d, v%d" % (T, T, S + 3))
        e("v_mov_b32 v%d, v%d" % (T + 1, S + 4))
        allred2(T, T + 2, T + 1, T + 3, "v_max_f32")
        e("s_lshl_b32 s%d, s%d, 3" % (sT0, sW))
        e("v_mov_b32 v%d, s%d" % (T + 2, sT0))
        e("s_mov_b64 exec, 1")
        e("ds_write_b64 v%d, v[%d:%d] offset:%d" % (T + 2, T, T + 1, WMAX))
        e("s_mov_b64 exec, -1")
        e("v_and_b32 v%d, 7, v%d" % (T + 3, vLane))
        e("v_lshlrev_b32 v%d, 3, v%d" % (T + 3, T + 3))
        e("s_waitcnt lgkmcnt(0)")
        stamp("kdone")
        e("s_barrier")
        e("ds_read_b64 v[%d:%d], v%d offset:%d" % (vMB, vMB + 1, T + 3, WMAX))
        e("s_waitcnt lgkmcnt(0)")
        for pat in ("quad_perm:[1,0,3,2]", "quad_perm:[2,3,0,1]", "row_half_mirror"):
            e("v_max_f32_dpp v%d, v%d, v%d %s %s" % (vMB, vMB, vMB, pat, D))
            e("v_max_f32_dpp v%d, v%d, v%d %s %s" % (vMA, vMA, vMA, pat, D))
        e("s_mov_b32 s%d, 0x%x" % (sT0, LOG2E))
        for q in range(5): e("v_sub_f32 v%d, v%d, v%d" % (S + q, S + q, vMB if q < 4 else vMA))
        for q in range(5): e("v_mul_f32 v%d, s%d, v%d" % (S + q, sT0, S + q))
        for q in range(5): e("v_exp_f32 v%d, v%d" % (S + q, S + q))
        for q in range(5): e("v_cvt_pk_bf16_f32 v%d, 0, v%d" % (S + q, S + q))
        for q in range(5): e("v_lshrrev_b32 v%d, 16, v%d" % (PL + q, S + q))
        e("v_add_f32 v%d, v%d, v%d" % (T, S, S + 1))
        e("v_add_f32 v%d, v%d, v%d" % (T + 1, S + 2, S + 3))
        e("v_add_f32 v%d, v%d, v%d" % (T, T, T + 1))
        e("v_mov_b32 v%d, v%d" % (T + 1, S + 4))
        allred2(T, T + 2, T + 1, T + 3, "v_add_f32")
        e("v_cmp_gt_u32 vcc, 4, v%d" % vLane)
        e("v_mul_f32 v%d, 0x3e000000, v%d" % (T + 2, vMB))
        e("v_mul_f32 v%d, 0x3e000000, v%d" % (T + 3, vMA))
        e("v_cndmask_b32 v%d, v%d, v%d, vcc" % (T, T + 2, T))
        e("v_cndmask_b32 v%d, v%d, v%d, vcc" % (T + 1, T + 3, T + 1))
        e("s_mul_i32 s%d, s%d, 800" % (sT0, sW))
        e("v_lshlrev_b32 v%d, 2, v%d" % (T + 4, vLane))
        e("v_add_u32 v%d, s%d, v%d" % (T + 4, sT0, T + 4))
        e("s_mov_b64 exec, 0xff")
        e("ds_write_b32 v%d, v%d offset:%d" % (T + 4, T, PARTVB + 768))
        e("ds_write_b32 v%d, v%d offset:%d" % (T + 4, T + 1, PARTVA + 768))
        e("s_mov_b64 exec, -1")
        stamp("pready")
    at(XK, softmax)
    XA = o["XA"]
    def ld_all():
        e("v_lshlrev_b32 v%d, 2, v%d" % (Z + 1, vLane))
        e("buffer_load_dword v%d, v%d, s[%d:%d], 0 offen sc1" % (Z, Z + 1, SDBG, SDBG + 3))
    def ck_all(): e("v_cmp_ne_u32 vcc, 0x01010101, v%d" % Z)
    def af1(step):
        isred("L_noaf1")
        ld_all(); vm.issue("af", "w1")
        lab("L_noaf1")
    def af2(step):
        isred("L_noaf2")
        vm.wait("af", "w1", force=True)
        ck_all()
        e("s_cbranch_vccz L_ok_af")
        spin("af", ld_all, ck_all, 8)
        lab("L_ok_af")
        lab("L_noaf2")
    at(XA, af1); at(XA + F, af2)
    def vgrp(t):
        def f(step):
            assert t <= landed[0], ("V not landed", t, step)
            if t < iVB: q, i = 4, t - iVA
            else: q, i = (t - iVB) // 4, (t - iVB) % 4
            dot12(PL + q, S + q, gslot(t), pos[i]); consumed[t] = step
            if t == iVB - 1:
                reduce12(PARTVA)
                for k in range(12): e("v_mov_b32 v%d, 0" % (acc + k))
        return f
    def landed_at(step):
        if step < NG: return max(need(u) for u in range(step + 1))
        return min(NG - 1, landed_at(NG - 1) + (step - NG + 1))
    st = XK; n = 0
    for t in range(iVA, iWO):
        while t > landed_at(st) or n >= o["VR"]:
            st += 1; n = 0
        at(st, vgrp(t)); n += 1
    XV = st
    def wo_addr(step):
        e("v_mul_u32_u24 v%d, 0x500, v%d" % (T, vG))
        e("v_lshl_add_u32 v%d, v%d, 4, v%d" % (vWA, vC, T))
        e("v_lshl_add_u32 v%d, v%d, 2, v%d" % (vWB, vC, T))
        e("v_add_u32 v%d, 0x100, v%d" % (vWB, vWB))
    at(XA + 1, wo_addr)
    def v_tail(step):
        stamp("vdone")
        reduce12(PARTVB)
        for k in range(10): e("v_mov_b32 v%d, 0" % (acc + k))
        e("s_waitcnt lgkmcnt(0)")
        e("s_barrier")
        e("s_cmp_ge_u32 s%d, 2" % sW)
        e("s_cbranch_scc1 L_nopub1")
        B = slot((iVB) % NS)
        assert iVB % NS + 6 <= NS
        for k in range(6): assert slot_owner[B + 6 * k] in consumed and slot_owner[B + 6 * k] < iWO
        sum8(vSum2, 0, 800, B)
        e("buffer_store_dwordx4 v[%d:%d], v%d, s[%d:%d], s%d offen sc1" % (B, B + 3, vP1st, SWS, SWS + 3, sP1own)); vm.issue("pub1", "w01")
        lab("L_nopub1")
        stamp("pub1")
    at(XV, v_tail)

    PD = o["PD"]
    RR = Z
    def ld_p1(): e("buffer_load_dwordx4 v[%d:%d], v%d, s[%d:%d], s%d offen sc1" % (RR, RR + 3, vL16, SWS, SWS + 3, sP1ld))
    def ck_x4(r):
        e("v_max3_u32 v%d, v%d, v%d, v%d" % (T, r, r + 1, r + 2))
        e("v_max_u32 v%d, v%d, v%d" % (T, T, r + 3))
        e("v_cmp_eq_u32 vcc, -1, v%d" % T)
    nsteps = NG
    for t in range(F0, max(NG, XV + 1)):
        if t < NG: pump(t)
        else: land(landed_at(t))
        for fn in work.get(t, []): fn(t)
        if o["STAMP"] and t in (12, 36): stamp("s%d" % t)
    if PD < NG: land(PD)
    ld_p1(); vm.issue("p1")
    stamp("polled")
    vm.wait("p1")
    ck_x4(RR)
    e("s_cbranch_vccz L_ok_p1")
    spin("p1", ld_p1, lambda: ck_x4(RR), o["SLEEP1"])
    lab("L_ok_p1")
    vm.all_done()
    stamp("got1")
    e("v_mov_b32_dpp v%d, v%d row_newbcast:7 row_mask:0xf bank_mask:0x3" % (T, RR))
    e("v_mov_b32_dpp v%d, v%d row_newbcast:15 row_mask:0xf bank_mask:0xc" % (T, RR))
    e("v_max_f32_dpp v%d, v%d, v%d row_ror:8 %s" % (T + 1, T, T, D))
    e("v_mov_b32 v%d, v%d" % (T + 2, T + 1))
    e("v_permlane16_swap_b32 v%d, v%d" % (T + 1, T + 2))
    e("v_max_f32 v%d, v%d, v%d" % (T + 1, T + 1, T + 2))
    e("v_mov_b32 v%d, v%d" % (T + 2, T + 1))
    e("v_permlane32_swap_b32 v%d, v%d" % (T + 1, T + 2))
    e("v_max_f32 v%d, v%d, v%d" % (T + 1, T + 1, T + 2))
    e("v_sub_f32 v%d, v%d, v%d" % (T, T, T + 1))
    e("v_mul_f32 v%d, 0x%x, v%d" % (T, LOG2E, T))
    e("v_exp_f32 v%d, v%d" % (T, T))
    for k in range(4): e("v_mul_f32 v%d, v%d, v%d" % (RR + k, RR + k, T))
    e("v_permlane32_swap_b32 v%d, v%d" % (RR, RR + 2))
    e("v_permlane32_swap_b32 v%d, v%d" % (RR + 1, RR + 3))
    e("v_add_f32 v%d, v%d, v%d" % (RR, RR, RR + 2))
    e("v_add_f32 v%d, v%d, v%d" % (RR + 1, RR + 1, RR + 3))
    e("v_permlane16_swap_b32 v%d, v%d" % (RR, RR + 1))
    e("v_add_f32 v%d, v%d, v%d" % (RR, RR, RR + 1))
    e("v_add_f32_dpp v%d, v%d, v%d row_ror:8 %s" % (RR, RR, RR, D))
    e("v_rcp_f32_dpp v%d, v%d row_newbcast:6 %s" % (T + 1, RR, D))
    e("v_mul_f32 v%d, v%d, v%d" % (RR, RR, T + 1))
    e("v_cvt_pk_bf16_f32 v%d, 0, v%d" % (T + 3, RR))
    e("v_lshrrev_b32 v%d, 16, v%d" % (T + 2, T + 3))
    for i in range(6):
        sl = gslot(iWO + i)
        dot12(T + 2, T + 3, sl, i, n=5)
    for k in range(5): e("v_permlane32_swap_b32 v%d, v%d" % (acc + k, acc + k + 5))
    for k in range(5): e("v_add_f32 v%d, v%d, v%d" % (acc + k, acc + k, acc + k + 5))
    e("v_mov_b32 v%d, v%d" % (acc + 5, acc + 4))
    e("v_permlane16_swap_b32 v%d, v%d" % (acc, acc + 1))
    e("v_permlane16_swap_b32 v%d, v%d" % (acc + 2, acc + 3))
    e("v_permlane16_swap_b32 v%d, v%d" % (acc + 4, acc + 5))
    for k in range(3): e("v_add_f32 v%d, v%d, v%d" % (acc + 2 * k, acc + 2 * k, acc + 2 * k + 1))
    for k, a_ in enumerate((vO1, vO2, vO3)): e("ds_write_b32 v%d, v%d offset:%d" % (a_, acc + 2 * k, PART3))
    e("s_waitcnt lgkmcnt(0)")
    e("s_barrier")
    e("s_cmp_lg_u32 s%d, 0" % sW)
    e("s_cbranch_scc1 L_nop2")
    sum8(vL16, PART3, 640, slot(iVB % NS))
    B = slot(iVB % NS)
    e("buffer_store_dwordx4 v[%d:%d], v%d, s[%d:%d], s%d offen sc1" % (B, B + 3, vP2st, SWS, SWS + 3, sP2st))
    stamp("pub2")
    e("s_branch L_fin")
    lab("L_nop2")
    isred("L_fin")
    H = Z
    def ld_p2(): e("buffer_load_dwordx4 v[%d:%d], v%d, s[%d:%d], s%d offen sc1" % (H, H + 3, vL16, SWS, SWS + 3, sP2ld))
    e("s_mov_b32 s%d, %d" % (sCNT, o["LIMIT"]))
    lab("L_poll2")
    ld_p2()
    e("s_waitcnt vmcnt(0)")
    ck_x4(H)
    e("s_cbranch_vccz L_got2")
    if o["SLEEP2"]: e("s_sleep %d" % o["SLEEP2"])
    e("s_sub_u32 s%d, s%d, 1" % (sCNT, sCNT))
    e("s_cmp_lg_u32 s%d, 0" % sCNT)
    e("s_cbranch_scc1 L_poll2")
    lab("L_got2")
    stamp("got2")
    e("v_permlane16_swap_b32 v%d, v%d" % (H, H + 1))
    e("v_permlane16_swap_b32 v%d, v%d" % (H + 2, H + 3))
    e("v_add_f32 v%d, v%d, v%d" % (H, H, H + 1))
    e("v_add_f32 v%d, v%d, v%d" % (H + 2, H + 2, H + 3))
    e("v_permlane32_swap_b32 v%d, v%d" % (H, H + 2))
    for r in (8, 4, 2, 1):
        e("v_add_f32_dpp v%d, v%d, v%d row_ror:%d %s" % (H, H, H, r, D))
        e("v_add_f32_dpp v%d, v%d, v%d row_ror:%d %s" % (H + 2, H + 2, H + 2, r, D))
    e("v_cvt_pk_bf16_f32 v%d, 0, v%d" % (H, H))
    e("v_cvt_pk_bf16_f32 v%d, 0, v%d" % (H + 2, H + 2))
    e("v_mul_f32 v%d, v%d, v%d" % (H, vGate, H))
    e("v_mul_f32 v%d, v%d, v%d" % (H + 2, vGate1, H + 2))
    e("v_cvt_pk_bf16_f32 v%d, 0, v%d" % (H, H))
    e("v_cvt_pk_bf16_f32 v%d, 0, v%d" % (H + 2, H + 2))
    e("v_add_f32 v%d, v%d, v%d" % (H, H, H + 2))
    e("v_cvt_pk_bf16_f32 v%d, v%d, v%d" % (H, H, H))
    e("buffer_store_short v%d, v%d, s[%d:%d], 0 offen" % (H, vOutA, SOUT, SOUT + 3))
    if o["DA"]:
        e("s_cmp_lg_u32 s2, %d" % o["DWG"])
        e("s_cbranch_scc1 L_fin")
        if o["DB"] == "end": stamp("end")
        e("s_sub_u32 s98, s98, s96")
        e("s_mul_i32 s98, s98, %d" % o["DK"])
        e("s_min_u32 s98, s98, 40000")
        e("s_memrealtime s[96:97]")
        e("s_waitcnt lgkmcnt(0)")
        e("s_add_u32 s98, s98, s96")
        e("s_mov_b32 s%d, 200000" % sCNT)
        lab("L_diag")
        e("s_memrealtime s[96:97]")
        e("s_waitcnt lgkmcnt(0)")
        e("s_sub_u32 s%d, s%d, 1" % (sCNT, sCNT))
        e("s_cmp_eq_u32 s%d, 0" % sCNT)
        e("s_cbranch_scc1 L_fin")
        e("s_sub_u32 s97, s96, s98")
        e("s_cmp_lt_i32 s97, 0")
        e("s_cbranch_scc1 L_diag")
    lab("L_fin")
    if o["STAMP"]:
        stamp("end")
        e("s_lshl_b32 s%d, s2, 3" % sT0)
        e("s_add_u32 s%d, s%d, s%d" % (sT0, sT0, sW))
        e("s_lshl_b32 s%d, s%d, 7" % (sT0, sT0))
        e("s_add_u32 s%d, s%d, %d" % (sT0, sT0, STB))
        e("s_mov_b64 exec, 1")
        for k in range(len(stamps)):
            e("v_mov_b32 v%d, s%d" % (T, sST + k))
            e("buffer_store_dword v%d, off, s[%d:%d], s%d offset:%d" % (T, SWS, SWS + 3, sT0, 4 * k))
            e("s_waitcnt vmcnt(0)")
    lab("L_exit")
    e("s_endpgm")

    body, nn = hazard_pass(L)
    head = open(os.path.join(os.path.dirname(os.path.abspath(__file__)), "header.txt")).read()
    txt = head.replace("@LAUNCH@", "; @launch grid=(256,1,1) block=(512,1,1) lds=%d" % LDS)
    txt += ".amdgcn_target \"amdgcn-amd-amdhsa--gfx950\"\n.text\n.globl %s\n.p2align 8\n.type %s,@function\n%s:\n" % (KNAME, KNAME, KNAME)
    txt += "\n".join(body) + "\n"
    txt += """.section .rodata,"a"
.p2align 6
.amdhsa_kernel %s
  .amdhsa_next_free_vgpr %d
  .amdhsa_next_free_sgpr 102
  .amdhsa_accum_offset %d
  .amdhsa_group_segment_fixed_size 0
  .amdhsa_kernarg_size 112
  .amdhsa_user_sgpr_count 2
  .amdhsa_user_sgpr_kernarg_segment_ptr 1
  .amdhsa_system_sgpr_workgroup_id_x 1
.end_amdhsa_kernel
""" % (KNAME, 256, 256)
    return txt, dict(nv=nv, nops=nn, stamps=",".join(stamps), ninstr=len(body), XQ=XQ, XK=XK, XV=XV)

if __name__ == "__main__":
    out = sys.argv[1]
    kw = {}
    for a in sys.argv[2:]:
        k, x = a.split("=")
        kw[k] = x if k in ("DA", "DB") else int(x, 0)
    txt, info = generate(**kw)
    open(out, "w").write(txt)
    print(out, info)
```
